```python
import torch

def _softmax(x, axis=-1):
    return torch.softmax(x, dim=axis)
def _gelu(x):
    return torch.nn.functional.gelu(x, approximate="tanh")
def _silu(x):
    return torch.nn.functional.silu(x)
def _sigmoid(x):
    return torch.sigmoid(x)
def _layernorm(x, axis=-1, eps=1e-5):
    m = x.mean(dim=axis, keepdim=True)
    v = x.var(dim=axis, keepdim=True, unbiased=False)
    return (x - m) / torch.sqrt(v + eps)
def _scatter_add(tgt, idx, src, axis=0):
    return tgt.clone().index_add_(axis, idx, src)
def _segment_sum(src, seg, n):
    out = torch.zeros((n,) + src.shape[1:], dtype=src.dtype)
    return out.index_add_(0, seg, src)
def _pad(x, pw):
    flat = tuple(v for pair in reversed(pw) for v in pair)
    return torch.nn.functional.pad(x, flat)

kernel_name = 'recurrent_scan__gqa_block_cached__glu_gated_geglu__decode'

def setup_inputs():

    _w = (lambda a: (lambda t: t.to(torch.bfloat16) if t.is_floating_point() else t)(torch.as_tensor(a)))
    def _A_setup():
        B, Sq, D = 1, 1, 512
        Hq, Hkv, Sk, Dh = 32, 8, 65536, 128
        assert Hq % Hkv == 0, (Hq, Hkv)
        return {
            "x": _w((lambda *s: torch.randn(*s, dtype=torch.bfloat16) * 0.4)(B, Sq, D)),
            "k_cache": _w((lambda *s: torch.randn(*s, dtype=torch.bfloat16) * 1.6)(B, Hkv, Sk, Dh)),
            "v_cache": _w((lambda *s: torch.randn(*s, dtype=torch.bfloat16) * 1.6)(B, Hkv, Sk, Dh)),
            "wq": _w((lambda *s: torch.randn(*s, dtype=torch.bfloat16) * 1.6)(D, Hq * Dh) * (D ** -0.5)),
            "wo": _w((lambda *s: torch.randn(*s, dtype=torch.bfloat16) * 1.6)(Hq * Dh, D) * ((Hq * Dh) ** -0.5)),
        }
    _A_in = _A_setup()

    def _B_setup():
        B, S, Dm, Df = 1, 1, 512, 1792
        return {
            "x": _w((lambda *s: torch.randn(*s, dtype=torch.bfloat16) * 0.4)(B, S, Dm)),
            "w_gate": _w((lambda *s: torch.randn(*s, dtype=torch.bfloat16) * 1.6)(Dm, Df) * (Dm ** -0.5)),
            "w_up": _w((lambda *s: torch.randn(*s, dtype=torch.bfloat16) * 1.6)(Dm, Df) * (Dm ** -0.5)),
            "w_down": _w((lambda *s: torch.randn(*s, dtype=torch.bfloat16) * 1.6)(Df, Dm) * (Df ** -0.5)),
        }
    _B_in = _B_setup()

    return {
        "A_x": _A_in["x"],
        "A_k_cache": _A_in["k_cache"],
        "A_v_cache": _A_in["v_cache"],
        "A_wq": _A_in["wq"],
        "A_wo": _A_in["wo"],
        "B_x": _B_in["x"],
        "B_w_gate": _B_in["w_gate"],
        "B_w_up": _B_in["w_up"],
        "B_w_down": _B_in["w_down"],
    }

def reference(A_x, A_k_cache, A_v_cache, A_wq, A_wo, B_x, B_w_gate, B_w_up, B_w_down):
    def _A_ref(x, k_cache, v_cache, wq, wo):
        B, Sq, D = x.shape
        Hq, Dh = 32, 128
        Hkv = k_cache.shape[1]
        rep = Hq // Hkv
        q = (lambda x, *d: x.permute(*d))((x @ wq).reshape(B, Sq, Hq, Dh), 0, 2, 1, 3)
        k = (lambda x, n, axis: torch.repeat_interleave(x, n, dim=axis))(k_cache, rep, axis=1)
        v = (lambda x, n, axis: torch.repeat_interleave(x, n, dim=axis))(v_cache, rep, axis=1)
        scores = torch.einsum("bhqd,bhkd->bhqk", q, k) * (Dh ** -0.5)
        p = _softmax(scores, axis=-1)
        o = torch.einsum("bhqk,bhkd->bhqd", p, v)
        return (lambda x, *d: x.permute(*d))(o, 0, 2, 1, 3).reshape(B, Sq, Hq * Dh) @ wo

    def _B_ref(x, w_gate, w_up, w_down):
        g = torch.einsum("bsd,df->bsf", x, w_gate)
        u = torch.einsum("bsd,df->bsf", x, w_up)
        h = _gelu(g) * u
        return torch.einsum("bsf,fd->bsd", h, w_down)

    x = A_x
    xn = _layernorm(x, axis=-1)
    s = _A_ref(xn, A_k_cache, A_v_cache, A_wq, A_wo)
    g = _silu(_B_ref(xn, B_w_gate, B_w_up, B_w_down))
    return x + s * g
```

```python
class Asm:
    def __init__(self):
        self.lines=[]
        self.vm=[]
        self.nlabel=0
    def __call__(self, s, *a):
        self.lines.append('  '+s)
    def c(self, s):
        self.lines.append('  ; '+s)
    def label(self, name):
        self.lines.append(name+':')
    def newlabel(self, base='L'):
        self.nlabel+=1
        return f'{base}_{self.nlabel}'
    def nop(self, n):
        while n>0:
            k=min(n,16)
            self(f's_nop {k-1}')
            n-=k
    def vmem(self, s, tag=None, certain=True):
        self(s)
        if certain:
            self.vm.append(tag)
    def vmwait(self, tag):
        idx=max(i for i,t in enumerate(self.vm) if t==tag)
        n=len(self.vm)-1-idx
        assert n<=63, n
        self(f's_waitcnt vmcnt({n})')
    def vmwait_n(self, n):
        self(f's_waitcnt vmcnt({n})')
    def text(self):
        return '\n'.join(self.lines)+'\n'

def vr(a,n=None):
    return f'v{a}' if n is None or n==1 else f'v[{a}:{a+n-1}]'
def sr(a,n=None):
    return f's{a}' if n is None or n==1 else f's[{a}:{a+n-1}]'
```

```python
import sys, json
sys.path.insert(0,'gen')
from asmlib import *

NAME='recurrent_scan__gqa_block_cached__glu_gated_geglu__decode_kernel'
REF=open('recurrent_scan__gqa_block_cached__glu_gated_geglu__decode.s.ref').read()
HDR=REF[:REF.index('; Override launch')]

WS_Q=0x1000; WS_ML=0x8000; WS_PART=0x10000; WS_SP=0x200000; WS_YP=0x300000; WS_STAMP=0x400000; WS_DBG=0x500000
WS_SIZE=0x1000000
L_XN=0; L_QP=8192; L_GU=8704; L_ML=9216; L_O16=9472; L_OB=16384; LDS_BYTES=32768
sK,sV,sWQ,sWO,sWG,sWU,sWD,sX,sOUT,sWS=28,32,36,40,44,48,52,56,60,64
sWAVE,sG,sI,sTAG,sKV,sT0,sPLO,sPHI,sSCALE,sLOG2E,sHI,sB=68,69,70,71,72,73,74,75,76,77,78,79
sH=80
sT1,sT2=88,89
sM=90
sCNT=94; sVALID=95
sST=96
sT3,sT4=98,99
vTID,vL,vKOFF,vV16,vMAX,vSUM,vMLOG,vM2=0,1,2,3,4,5,6,7
vX=8
vEP=12
vT=16
vQP=40
vQF=56
vS=64
vO=96
vR=128
RING=32

def dpp(ctrl, bank=0xf, row=0xf): return f'{ctrl} row_mask:0x{row:x} bank_mask:0x{bank:x}'
XOR1='quad_perm:[1,0,3,2]'; XOR2='quad_perm:[2,3,0,1]'; HM='row_half_mirror'; RM='row_mirror'

def gen(W=4, BURST=8, QPOLL=20, QCHK=28, diag=False, dbg=False, kflags='nt', wflags='', woflags='nt', pollflags='sc1', stflags='sc1'):
    A=Asm()
    def stamp(k, wave0only=True):
        if not diag: return
        lab=A.newlabel('Lst')
        A(f's_cmp_lg_u32 s{sWAVE}, 0'); A(f's_cbranch_scc1 {lab}')
        A(f's_memrealtime s[{sST}:{sST+1}]'); A('s_waitcnt lgkmcnt(0)')
        A(f'v_mov_b32 v14, s{sST}'); A(f'v_mov_b32 v15, s{sST+1}')
        A(f's_lshl_b32 s{sT3}, s2, 7'); A(f's_add_u32 s{sT3}, s{sT3}, {WS_STAMP+8*k}')
        A(f's_mov_b64 exec, 1')
        A(f'buffer_store_dwordx2 v[14:15], off, s[{sWS}:{sWS+3}], s{sT3}')
        A(f's_mov_b64 exec, -1')
        A.label(lab)
    def allred(op, v, t, bits=(0,1,2,3,4,5)):
        ins={'add':'v_add_f32','max':'v_max_f32'}[op]
        m={0:XOR1,1:XOR2,2:HM,3:RM}
        for b in bits:
            if b<4:
                A.nop(2)
                A(f'{ins}_dpp v{v}, v{v}, v{v} {dpp(m[b])}')
            else:
                A(f'v_mov_b32 v{t}, v{v}')
                A.nop(2)
                A(f'v_permlane{16 if b==4 else 32}_swap_b32 v{v}, v{t}')
                A(f'{ins} v{v}, v{v}, v{t}')
    def treduce(vals, bits, tmp):
        vals=list(vals)
        for b in bits:
            n=len(vals)//2
            lo,hi=vals[:n],vals[n:]
            if b in (3,2):
                ctrl=RM if b==3 else HM
                m0,m1=(0x3,0xC) if b==3 else (0x5,0xA)
                A.nop(2)
                for k in range(n):
                    A(f'v_add_f32_dpp v{lo[k]}, v{lo[k]}, v{lo[k]} {dpp(ctrl,bank=m0)}')
                if n<3: A.nop(2)
                for k in range(n):
                    A(f'v_add_f32_dpp v{lo[k]}, v{hi[k]}, v{hi[k]} {dpp(ctrl,bank=m1)}')
            else:
                ctrl=XOR2 if b==1 else XOR1
                mask=0xCCCCCCCC if b==1 else 0xAAAAAAAA
                A(f's_mov_b32 s{sM}, 0x{mask:x}'); A(f's_mov_b32 s{sM+1}, 0x{mask:x}')
                A.nop(2)
                for k in range(n):
                    A(f'v_add_f32_dpp v{lo[k]}, v{lo[k]}, v{lo[k]} {dpp(ctrl)}')
                    A(f'v_add_f32_dpp v{hi[k]}, v{hi[k]}, v{hi[k]} {dpp(ctrl)}')
                for k in range(n):
                    A(f'v_cndmask_b32 v{lo[k]}, v{lo[k]}, v{hi[k]}, s[{sM}:{sM+1}]')
            vals=lo
        return vals[0]
    def rne(dst, src):
        A(f'v_cvt_pk_bf16_f32 v{dst}, v{src}, v{src}')
        A(f'v_and_b32 v{dst}, s{sHI}, v{dst}')
    def tagcheck(regs, t, retry):
        A(f'v_xor_b32 v{t}, s{sTAG}, v{regs[0]}')
        for r in regs[1:]:
            A(f'v_xor_b32 v{t+1}, s{sTAG}, v{r}')
            A(f'v_or_b32 v{t}, v{t}, v{t+1}')
        A(f'v_cmp_ne_u32 vcc, 0, v{t}')
        A('s_cmp_lg_u64 vcc, 0')
        A(f's_cbranch_scc1 {retry}')

    A('s_cmp_ge_u32 s2, 256'); A('s_cbranch_scc1 L_end')
    A('s_load_dwordx16 s[4:19], s[0:1], 0'); A('s_load_dwordx8 s[20:27], s[0:1], 64')
    if diag:
        A(f's_memrealtime s[{sST}:{sST+1}]')
    A(f'v_and_b32 v{vL}, 63, v0'); A(f'v_lshrrev_b32 v7, 6, v0'); A.nop(1); A(f'v_readfirstlane_b32 s{sWAVE}, v7')
    A(f's_lshr_b32 s{sG}, s2, 5'); A(f's_and_b32 s{sI}, s2, 31')
    A(f's_mov_b32 s{sPLO}, 0x05040100'); A(f's_mov_b32 s{sPHI}, 0x07060302')
    A(f's_mov_b32 s{sSCALE}, 0x3db504f3'); A(f's_mov_b32 s{sLOG2E}, 0x3fb8aa3b'); A(f's_mov_b32 s{sHI}, 0xffff0000')
    A(f'v_lshlrev_b32 v{vV16}, 4, v{vL}')
    A(f'v_and_b32 v{vKOFF}, 3, v{vL}'); A(f'v_lshlrev_b32 v{vKOFF}, 10, v{vKOFF}')
    A(f'v_bfe_u32 v7, v{vL}, 2, 1'); A(f'v_lshl_add_u32 v{vKOFF}, v7, 8, v{vKOFF}')
    A(f'v_lshrrev_b32 v7, 3, v{vL}'); A(f'v_lshl_add_u32 v{vKOFF}, v7, 4, v{vKOFF}')
    A(f'v_and_b32 v14, 31, v{vL}'); A(f'v_lshlrev_b32 v14, 14, v14'); A(f'v_lshrrev_b32 v7, 5, v{vL}'); A(f'v_lshl_add_u32 v14, v7, 4, v14')
    A(f'v_mul_u32_u24 v15, 3584, v{vL}')
    A(f'v_lshlrev_b32 v13, 2, v{vL}')
    A(f's_lshl_b32 s{sKV}, s{sG}, 24'); A(f's_lshl_b32 s{sT0}, s{sI}, 3'); A(f's_add_u32 s{sT0}, s{sT0}, s{sWAVE}')
    A(f's_lshl_b32 s{sT0}, s{sT0}, 13'); A(f's_add_u32 s{sKV}, s{sKV}, s{sT0}')
    A(f's_and_b32 s{sT0}, s2, 7'); A(f's_lshr_b32 s{sT1}, s2, 6'); A(f's_lshl_b32 s{sT1}, s{sT1}, 3'); A(f's_add_u32 s{sT0}, s{sT0}, s{sT1}')
    A(f's_cmp_lt_u32 s{sT0}, 28'); A(f's_cselect_b32 s{sVALID}, 1, 0'); A(f's_cselect_b32 s{sT0}, s{sT0}, 0')
    A(f's_lshl_b32 s{sT0}, s{sT0}, 3'); A(f's_lshr_b32 s{sT1}, s2, 3'); A(f's_and_b32 s{sT1}, s{sT1}, 7'); A(f's_add_u32 s{sB}, s{sT0}, s{sT1}')
    A('s_waitcnt lgkmcnt(0)')
    for (d,p,sz) in ((sX,4,1024),(sK,6,128<<20),(sV,8,128<<20),(sWQ,10,4<<20),(sWO,12,4<<20),(sWG,16,512*1792*2),(sWU,18,512*1792*2),(sWD,20,512*1792*2),(sOUT,22,1024),(sWS,26,WS_SIZE)):
        A(f's_mov_b32 s{d}, s{p}'); A(f's_mov_b32 s{d+1}, s{p+1}'); A(f's_mov_b32 s{d+2}, 0x{sz:x}'); A(f's_mov_b32 s{d+3}, 0x00020000')
    if diag:
        lab=A.newlabel('Lst')
        A(f's_cmp_lg_u32 s{sWAVE}, 0'); A(f's_cbranch_scc1 {lab}')
        A(f'v_mov_b32 v16, s{sST}'); A(f'v_mov_b32 v17, s{sST+1}')
        A(f's_lshl_b32 s{sT3}, s2, 7'); A(f's_add_u32 s{sT3}, s{sT3}, {WS_STAMP}')
        A(f's_mov_b64 exec, 1'); A(f'buffer_store_dwordx2 v[16:17], off, s[{sWS}:{sWS+3}], s{sT3}'); A(f's_mov_b64 exec, -1')
        A.label(lab)
    A.vmem(f'buffer_load_dwordx4 v[{vX}:{vX+3}], v{vV16}, s[{sX}:{sX+3}], 0 offen','x')
    A.vmem(f'buffer_load_dword v{vEP}, off, s[{sWS}:{sWS+3}], 0 sc1','ep')
    A(f's_and_b32 s{sT0}, s{sI}, 7'); A(f's_lshl_b32 s{sT0}, s{sT0}, 2'); A(f's_lshr_b32 s{sT1}, s{sI}, 3'); A(f's_add_u32 s{sT0}, s{sT0}, s{sT1}')
    A(f's_mov_b32 s{sT4}, s{sT0}')
    A(f's_lshl_b32 s{sT0}, s{sT0}, 5'); A(f's_lshl_b32 s{sT1}, s{sG}, 10'); A(f's_add_u32 s{sT0}, s{sT0}, s{sT1}')
    A(f's_lshl_b32 s{sT1}, s{sWAVE}, 19'); A(f's_add_u32 s{sT0}, s{sT0}, s{sT1}'); A(f's_add_u32 s{sT1}, s{sT0}, 8192')
    A.vmem(f'buffer_load_dwordx4 v[96:99], v14, s[{sWQ}:{sWQ+3}], s{sT0} offen {wflags}','wq0')
    A.vmem(f'buffer_load_dwordx4 v[100:103], v14, s[{sWQ}:{sWQ+3}], s{sT1} offen {wflags}','wq1')
    A(f's_mul_i32 s{sT0}, s{sWAVE}, 229376'); A(f's_lshl_b32 s{sT1}, s{sB}, 4'); A(f's_add_u32 s{sT0}, s{sT0}, s{sT1}')
    A.vmem(f'buffer_load_dwordx4 v[104:107], v15, s[{sWG}:{sWG+3}], s{sT0} offen {wflags}','wg')
    A.vmem(f'buffer_load_dwordx4 v[108:111], v15, s[{sWU}:{sWU+3}], s{sT0} offen {wflags}','wu')
    A(f's_lshl_b32 s{sT0}, s{sB}, 13'); A(f's_and_b32 s{sT1}, s{sWAVE}, 3'); A(f's_lshl_b32 s{sT1}, s{sT1}, 8'); A(f's_add_u32 s{sT0}, s{sT0}, s{sT1}')
    A(f's_add_u32 s{sT1}, s{sT0}, 4096')
    for r in range(8):
        A.vmem(f'buffer_load_dword v{112+r}, v13, s[{sWD}:{sWD+3}], s{sT0 if r<4 else sT1} offen offset:{(r%4)*1024} {woflags}','wd')

    NL=128
    state={'i':0}
    def kv_load(idx):
        isK=idx<64; t=(idx%64)//8; e=idx%8
        slot=idx%RING; r=vR+4*slot
        if e%4==0:
            off=t*(256*8192)+(e//4)*4096
            A(f's_add_u32 s{sT2}, s{sKV}, 0x{off:x}')
        if isK:
            q=e%4; imm=(q//2)*512+(q%2)*128
            A.vmem(f'buffer_load_dwordx4 v[{r}:{r+3}], v{vKOFF}, s[{sK}:{sK+3}], s{sT2} offen offset:{imm} {kflags}',('kv',idx))
        else:
            imm=(e%4)*1024
            A.vmem(f'buffer_load_dwordx4 v[{r}:{r+3}], v{vV16}, s[{sV}:{sV+3}], s{sT2} offen offset:{imm} {kflags}',('kv',idx))
    def issue_next(window=True):
        i=state['i']
        if window and i>=W:
            A.vmwait(('kv',i-W))
        kv_load(i)
        state['i']=i+1
        if i+1==QPOLL: q_poll_issue()
    def q_poll_issue():
        for k in range(4):
            A.vmem(f'buffer_load_dwordx4 v[{vQP+4*k}:{vQP+4*k+3}], v12, s[{sWS}:{sWS+3}], s{sT1} offen offset:{(k//2)*256+(k%2)*16} {pollflags}',('qp',k))

    for _ in range(BURST): issue_next(window=False)

    A.c('layernorm')
    A.vmwait('x')
    f=16
    for k in range(4):
        A(f'v_lshlrev_b32 v{f+2*k}, 16, v{vX+k}'); A(f'v_and_b32 v{f+2*k+1}, s{sHI}, v{vX+k}')
    A(f'v_add_f32 v24, v16, v17'); A('v_add_f32 v25, v18, v19'); A('v_add_f32 v26, v20, v21'); A('v_add_f32 v27, v22, v23')
    A('v_add_f32 v24, v24, v25'); A('v_add_f32 v26, v26, v27'); A('v_add_f32 v24, v24, v26')
    allred('add',24,25)
    A('v_mul_f32 v24, 0x3b000000, v24')
    for k in range(8): A(f'v_sub_f32 v{28+k}, v{16+k}, v24')
    A('v_mul_f32 v25, v28, v28')
    for k in range(1,8): A(f'v_fmac_f32 v25, v{28+k}, v{28+k}')
    allred('add',25,26)
    A('v_mul_f32 v25, 0x3b000000, v25')
    A('v_cvt_pk_bf16_f32 v26, v24, v25')
    A('v_lshlrev_b32 v24, 16, v26')
    A(f'v_and_b32 v25, s{sHI}, v26')
    A('v_add_f32 v25, 0x3727c5ac, v25')
    rne(25,25)
    A('v_sqrt_f32 v25, v25'); A.nop(1)
    rne(25,25)
    A('v_rcp_f32 v26, v25')
    for k in range(4):
        A(f'v_sub_f32 v{28+2*k}, v{16+2*k}, v24'); A(f'v_sub_f32 v{29+2*k}, v{17+2*k}, v24')
        A(f'v_cvt_pk_bf16_f32 v27, v{28+2*k}, v{29+2*k}')
        A(f'v_lshlrev_b32 v{28+2*k}, 16, v27'); A(f'v_and_b32 v{29+2*k}, s{sHI}, v27')
    for k in range(8):
        A(f'v_mul_f32 v{16+k}, v{28+k}, v26')
        A(f'v_fma_f32 v27, -v{16+k}, v25, v{28+k}')
        A(f'v_fma_f32 v{16+k}, v27, v26, v{16+k}')
    for k in range(4):
        A(f'v_cvt_pk_bf16_f32 v{vX+k}, v{16+2*k}, v{17+2*k}')
    A(f's_lshl_b32 s{sT0}, s{sWAVE}, 10'); A(f'v_add_u32 v16, s{sT0}, v{vV16}')
    A(f'ds_write_b128 v16, v[{vX}:{vX+3}]')
    A(f's_mul_i32 s{sT0}, s{sWAVE}, 1152')
    A(f'v_and_b32 v17, 31, v{vL}'); A(f'v_lshlrev_b32 v17, 2, v17'); A(f'v_add_u32 v17, s{sT0}, v17')
    A(f'v_lshlrev_b32 v18, 1, v{vL}'); A(f'v_add_u32 v18, s{sT0}, v18')
    A('s_waitcnt lgkmcnt(0)')
    A('ds_read_b32 v19, v17'); A('ds_read_u16 v20, v18')
    A.vmwait('ep')
    A(f'v_readfirstlane_b32 s{sTAG}, v{vEP}'); A.nop(1)
    A(f's_add_u32 s{sTAG}, s{sTAG}, 0x9e3779b9')
    A(f'v_and_b32 v12, 3, v{vL}'); A(f'v_lshlrev_b32 v12, 9, v12'); A(f'v_lshrrev_b32 v21, 4, v{vL}'); A(f'v_lshl_add_u32 v12, v21, 6, v12')
    A(f'v_bfe_u32 v21, v{vL}, 2, 1'); A(f'v_lshl_add_u32 v12, v21, 5, v12')
    A.c('q partial')
    A.vmwait('wq1')
    for j in range(4):
        A(f'v_perm_b32 v{24+2*j}, v{100+j}, v{96+j}, s{sPLO}')
        A(f'v_perm_b32 v{25+2*j}, v{100+j}, v{96+j}, s{sPHI}')
    A('s_waitcnt lgkmcnt(0)')
    for k in range(8):
        A(f'v_dot2_f32_bf16 v{32+k}, v{24+k}, v19, 0')
    A.nop(3)
    r=treduce([32+k for k in range(8)],(3,2,1),None)
    allred('add',r,24,bits=(0,4))
    A(f'v_lshrrev_b32 v24, 5, v{vL}'); A(f'v_lshlrev_b32 v24, 5, v24'); A(f'v_bfe_u32 v25, v{vL}, 1, 3'); A(f'v_lshl_add_u32 v24, v25, 2, v24')
    A(f's_lshl_b32 s{sT0}, s{sWAVE}, 6'); A(f's_add_u32 s{sT0}, s{sT0}, {L_QP}'); A(f'v_add_u32 v24, s{sT0}, v24')
    A(f'ds_write_b32 v24, v{r}')
    A.c('gate/up partial')
    A('v_lshlrev_b32 v21, 16, v20')
    A.vmwait('wu')
    for m,base in ((0,104),(1,108)):
        for j in range(4):
            A(f'v_dot2_f32_bf16 v{24+8*m+2*j}, v{base+j}, v20, 0')
            A(f'v_dot2_f32_bf16 v{25+8*m+2*j}, v{base+j}, v21, 0')
    A.nop(3)
    r=treduce([24+k for k in range(16)],(3,2,1,0),None)
    allred('add',r,41,bits=(4,5))
    A(f'v_and_b32 v41, 15, v{vL}'); A(f'v_lshlrev_b32 v41, 2, v41')
    A(f's_lshl_b32 s{sT0}, s{sWAVE}, 6'); A(f's_add_u32 s{sT0}, s{sT0}, {L_GU}'); A(f'v_add_u32 v42, s{sT0}, v41')
    A(f'ds_write_b32 v42, v{r}')
    A('s_waitcnt lgkmcnt(0)')
    A('s_barrier')
    stamp(1)
    lab=A.newlabel('Lq')
    A(f's_cmp_lg_u32 s{sWAVE}, 0'); A(f's_cbranch_scc1 {lab}')
    A(f'v_add_u32 v42, {L_QP}, v41')
    for k in range(4):
        A(f'ds_read2_b32 v[{24+2*k}:{25+2*k}], v42 offset0:{32*k} offset1:{32*k+16}')
    A('s_waitcnt lgkmcnt(0)')
    A('v_add_f32 v24, v24, v25'); A('v_add_f32 v26, v26, v27'); A('v_add_f32 v28, v28, v29'); A('v_add_f32 v30, v30, v31')
    A('v_add_f32 v24, v24, v26'); A('v_add_f32 v28, v28, v30'); A('v_add_f32 v24, v24, v28')
    A.nop(2)
    A(f'v_mov_b32_dpp v25, v24 {dpp(XOR1)}')
    A('v_cvt_pk_bf16_f32 v24, v24, v25')
    A.nop(2)
    A(f'v_mov_b32_dpp v26, v24 {dpp(XOR2)}')
    A(f'v_mov_b32 v25, s{sTAG}'); A(f'v_mov_b32 v27, s{sTAG}')
    A(f's_lshl_b32 s{sT0}, s{sG}, 11'); A(f's_lshl_b32 s{sT1}, s{sT4}, 6'); A(f's_add_u32 s{sT0}, s{sT0}, s{sT1}'); A(f's_add_u32 s{sT0}, s{sT0}, {WS_Q}')
    A('s_mov_b64 exec, 0x1111')
    A.vmem(f'buffer_store_dwordx4 v[24:27], v13, s[{sWS}:{sWS+3}], s{sT0} offen {stflags}',certain=False)
    A('s_mov_b64 exec, -1')
    A.label(lab)
    lab=A.newlabel('Ly')
    A(f's_cmp_ge_u32 s{sWAVE}, 4'); A(f's_cbranch_scc1 {lab}')
    A(f's_cmp_eq_u32 s{sVALID}, 0'); A(f's_cbranch_scc1 {lab}')
    A(f'v_add_u32 v42, {L_GU}, v41')
    for k in range(4):
        A(f'ds_read2_b32 v[{24+2*k}:{25+2*k}], v42 offset0:{32*k} offset1:{32*k+16}')
    A('s_waitcnt lgkmcnt(0)')
    A('v_add_f32 v24, v24, v25'); A('v_add_f32 v26, v26, v27'); A('v_add_f32 v28, v28, v29'); A('v_add_f32 v30, v30, v31')
    A('v_add_f32 v24, v24, v26'); A('v_add_f32 v28, v28, v30'); A('v_add_f32 v24, v24, v28')
    rne(24,24)
    A('v_mul_f32 v25, v24, v24'); A('v_mul_f32 v25, v25, v24')
    A('v_mov_b32 v26, 0x3d372713')
    A('v_fma_f32 v25, v25, v26, v24')
    A('v_mul_f32 v25, 0xc0135761, v25')
    A('v_exp_f32 v25, v25'); A.nop(1)
    A('v_add_f32 v25, 1.0, v25'); A('v_rcp_f32 v25, v25'); A.nop(1)
    A('v_mul_f32 v25, v24, v25')
    rne(25,25)
    A.nop(2)
    A(f'v_mov_b32_dpp v26, v24 {dpp("row_shl:8")}')
    A('v_mul_f32 v25, v25, v26')
    rne(25,25)
    A.nop(1)
    for r in range(8): A(f'v_readlane_b32 s{sH+r}, v25, {r}')
    A.vmwait('wd')
    A('v_mov_b32 v24, 0'); A('v_mov_b32 v26, 0')
    for r in range(8):
        A(f'v_lshlrev_b32 v28, 16, v{112+r}'); A(f'v_and_b32 v29, s{sHI}, v{112+r}')
        A(f'v_fmac_f32 v24, s{sH+r}, v28'); A(f'v_fmac_f32 v26, s{sH+r}, v29')
    A(f'v_mov_b32 v25, s{sTAG}'); A(f'v_mov_b32 v27, s{sTAG}')
    A(f's_lshl_b32 s{sT0}, s{sB}, 12'); A(f's_lshl_b32 s{sT1}, s{sWAVE}, 10'); A(f's_add_u32 s{sT0}, s{sT0}, s{sT1}'); A(f's_add_u32 s{sT0}, s{sT0}, {WS_YP}')
    A.vmem(f'buffer_store_dwordx4 v[24:27], v{vV16}, s[{sWS}:{sWS+3}], s{sT0} offen {stflags}',certain=False)
    A.label(lab)
    A(f's_lshl_b32 s{sT1}, s{sG}, 11'); A(f's_add_u32 s{sT1}, s{sT1}, {WS_Q}')
    A(f'v_mov_b32 v{vMAX}, 0xff800000'); A(f'v_mov_b32 v{vSUM}, 0')

    def k_chunk(T,a):
        base=8*T+4*a
        R=[vR+4*((base+e)%RING) for e in range(4)]
        DA,DB=16,20
        A(f'v_mfma_f32_16x16x32_bf16 v[{DA}:{DA+3}], v[{R[0]}:{R[0]+3}], v[{vQF}:{vQF+3}], 0')
        A(f'v_mfma_f32_16x16x32_bf16 v[{DB}:{DB+3}], v[{R[2]}:{R[2]+3}], v[{vQF}:{vQF+3}], 0')
        A(f'v_mfma_f32_16x16x32_bf16 v[{DA}:{DA+3}], v[{R[1]}:{R[1]+3}], v[{vQF+4}:{vQF+7}], v[{DA}:{DA+3}]')
        A(f'v_mfma_f32_16x16x32_bf16 v[{DB}:{DB+3}], v[{R[3]}:{R[3]+3}], v[{vQF+4}:{vQF+7}], v[{DB}:{DB+3}]')
        A.nop(8)
        for r in range(4): A(f'v_permlane32_swap_b32 v{DA+r}, v{DB+r}')
        for r in range(4): A(f'v_add_f32_dpp v{24+r}, v{DB+r}, v{DA+r} row_shl:4 row_mask:0xf bank_mask:0xf bound_ctrl:0')
        A(f'v_max3_f32 v{vMAX}, v24, v25, v{vMAX}'); A(f'v_max3_f32 v{vMAX}, v26, v27, v{vMAX}')
        A('v_cvt_pk_bf16_f32 v28, v24, v25'); A('v_cvt_pk_bf16_f32 v29, v26, v27')
        A('v_lshlrev_b32 v24, 16, v28'); A(f'v_and_b32 v25, s{sHI}, v28'); A('v_lshlrev_b32 v26, 16, v29'); A(f'v_and_b32 v27, s{sHI}, v29')
        for r in range(4): A(f'v_mul_f32 v{24+r}, s{sSCALE}, v{24+r}')
        d=vS+4*T+2*a
        A(f'v_cvt_pk_bf16_f32 v{d}, v24, v25'); A(f'v_cvt_pk_bf16_f32 v{d+1}, v26, v27')
    def maxfin():
        allred('max',vMAX,24,bits=(4,5))
        rne(vM2,vMAX); A(f'v_mul_f32 v{vM2}, s{sSCALE}, v{vM2}'); rne(vM2,vM2)
        A(f'v_mul_f32 v{vMLOG}, s{sLOG2E}, v{vM2}')
    vP=32
    def v_exp(U):
        s=vS+4*U
        for k in range(4):
            A(f'v_lshlrev_b32 v{24+2*k}, 16, v{s+k}'); A(f'v_and_b32 v{25+2*k}, s{sHI}, v{s+k}')
        for k in range(8): A(f'v_fma_f32 v{24+k}, v{24+k}, s{sLOG2E}, -v{vMLOG}')
        for k in range(8): A(f'v_exp_f32 v{24+k}, v{24+k}')
        A.nop(1)
        for k in range(4): A(f'v_cvt_pk_bf16_f32 v{vP+k}, v{24+2*k}, v{25+2*k}')
        A('v_add_f32 v24, v24, v25'); A('v_add_f32 v26, v26, v27'); A('v_add_f32 v28, v28, v29'); A('v_add_f32 v30, v30, v31')
        A('v_add_f32 v24, v24, v26'); A('v_add_f32 v28, v28, v30'); A('v_add_f32 v24, v24, v28'); A(f'v_add_f32 v{vSUM}, v{vSUM}, v24')
    def v_pv(U,jp):
        R=[vR+4*((64+8*U+t)%RING) for t in range(8)]
        for jj in range(2):
            j=2*jp+jj
            F=[16+8*jj, 20+8*jj] if False else [16,20]
            Fb=16 if jj==0 else 40
            for hi in range(2):
                fr=Fb+4*hi
                for u in range(4):
                    A(f'v_perm_b32 v{fr+u}, v{R[2*u+1]+j}, v{R[2*u]+j}, s{sPHI if hi else sPLO}')
            A.nop(2)
            for hi in range(2):
                i=2*j+hi; fr=Fb+4*hi; D=vO+4*i
                c='0' if U==0 else f'v[{D}:{D+3}]'
                A(f'v_mfma_f32_16x16x32_bf16 v[{D}:{D+3}], v[{vP}:{vP+3}], v[{fr}:{fr+3}], {c}')
    def q_check():
        retry=A.newlabel('Lqr'); ok=A.newlabel('Lqok')
        A.vmwait(('qp',3))
        A(f's_mov_b32 s{sCNT}, 0')
        chk=A.newlabel('Lqc')
        A.label(chk)
        tagcheck([vQP+4*k+o for k in range(4) for o in (1,3)],24,retry)
        A(f's_branch {ok}')
        A.label(retry)
        A(f's_add_u32 s{sCNT}, s{sCNT}, 1'); A(f's_cmp_gt_u32 s{sCNT}, 0x8000'); A('s_cbranch_scc1 L_end')
        for k in range(4):
            A(f'buffer_load_dwordx4 v[{vQP+4*k}:{vQP+4*k+3}], v12, s[{sWS}:{sWS+3}], s{sT1} offen offset:{(k//2)*256+(k%2)*16} {pollflags}')
        A('s_waitcnt vmcnt(0)')
        A(f's_branch {chk}')
        A.label(ok)
        for k in range(4):
            A(f'v_mov_b32 v{vQF+2*k}, v{vQP+4*k}'); A(f'v_mov_b32 v{vQF+2*k+1}, v{vQP+4*k+2}')
        A.nop(2)
    work=[]
    for T in range(8):
        for a in range(2):
            work.append((8*T+4*a+3,[8*T+4*a+e for e in range(4)],(lambda T=T,a=a:k_chunk(T,a))))
    work.append((-1,[],maxfin))
    for U in range(8):
        work.append((-1,[],(lambda U=U:v_exp(U))))
        work.append((64+8*U+7,[],(lambda U=U:v_pv(U,0))))
        work.append((64+8*U+7,[64+8*U+t for t in range(8)],(lambda U=U:v_pv(U,1))))
    freed=set()
    wi=0
    qdone=False
    while state['i']<QCHK: issue_next()
    q_check()
    stamp(2)
    tail_issued=False
    while wi<len(work) or state['i']<NL:
        i=state['i']
        issued=False
        if i<NL and (i<RING or (i-RING) in freed):
            issue_next(); issued=True
        if state['i']==NL and not tail_issued:
            tail_issued=True
        landed=state['i']-1-W if state['i']<NL else -2
        if wi<len(work):
            need,fr,fn=work[wi]
            if need<=landed or not issued:
                if need>landed and need>=0:
                    A.vmwait(('kv',need))
                fn(); freed.update(fr); wi+=1
                if wi==17: stamp(3)
    stamp(4)
    A.c('tail: wo loads')
    for r in range(16): A(f'v_mov_b32 v{vR+r}, 0')
    A(f'v_lshlrev_b32 v13, 1, v{vL}')
    A(f's_lshl_b32 s{sT0}, s{sG}, 19'); A(f's_lshl_b32 s{sT1}, s{sI}, 14'); A(f's_add_u32 s{sT0}, s{sT0}, s{sT1}')
    A(f's_lshl_b32 s{sT1}, s{sWAVE}, 7'); A(f's_add_u32 s{sT0}, s{sT0}, s{sT1}')
    for r in range(16):
        if r%4==0 and r>0: A(f's_add_u32 s{sT0}, s{sT0}, 4096')
        A.vmem(f'buffer_load_short_d16_hi v{vR+r}, v13, s[{sWO}:{sWO+3}], s{sT0} offen offset:{(r%4)*1024} {woflags}','wo')
    A(f's_lshl_b32 s{sT0}, s2, 2')
    A.vmem(f'buffer_load_dword v{vEP}, off, s[{sX}:{sX+3}], s{sT0}','xf')
    A.c('wave-level m,l')
    allred('add',vSUM,24,bits=(4,5))
    A(f'v_mov_b32 v24, v{vM2}'); A(f'v_mov_b32 v25, v{vSUM}')
    A(f's_lshl_b32 s{sT0}, s{sWAVE}, 5'); A(f's_add_u32 s{sT0}, s{sT0}, {L_ML}')
    A(f'v_lshlrev_b32 v26, 3, v{vL}'); A(f'v_add_u32 v26, s{sT0}, v26')
    A('s_mov_b64 exec, 0xf'); A('ds_write_b64 v26, v[24:25]'); A('s_mov_b64 exec, -1')
    A('s_waitcnt lgkmcnt(0)'); A('s_barrier')
    A(f'v_and_b32 v26, 31, v{vL}'); A(f'v_lshlrev_b32 v26, 3, v26')
    A(f'ds_read_b64 v[24:25], v26 offset:{L_ML}')
    A('s_waitcnt lgkmcnt(0)')
    A('v_mov_b32 v27, v24')
    A.nop(2); A(f'v_max_f32_dpp v27, v27, v27 {dpp("row_ror:4")}')
    A.nop(2); A(f'v_max_f32_dpp v27, v27, v27 {dpp("row_ror:8")}')
    allred('max',27,28,bits=(4,))
    A('v_sub_f32 v24, v24, v27'); A(f'v_mul_f32 v24, s{sLOG2E}, v24'); A('v_exp_f32 v24, v24'); A.nop(1)
    A('v_mul_f32 v25, v25, v24')
    A.nop(2); A(f'v_add_f32_dpp v25, v25, v25 {dpp("row_ror:4")}')
    A.nop(2); A(f'v_add_f32_dpp v25, v25, v25 {dpp("row_ror:8")}')
    allred('add',25,28,bits=(4,))
    A(f's_lshl_b32 s{sT0}, s{sWAVE}, 2')
    for h in range(4):
        A(f'v_readlane_b32 s{sH+h}, v24, s{sT0}')
        if h<3: A(f's_add_u32 s{sT0}, s{sT0}, 1')
    lab=A.newlabel('Lml')
    A(f's_cmp_lg_u32 s{sWAVE}, 4'); A(f's_cbranch_scc1 {lab}')
    A(f'v_mov_b32 v28, v27'); A(f'v_mov_b32 v29, s{sTAG}'); A(f'v_mov_b32 v30, v25'); A(f'v_mov_b32 v31, s{sTAG}')
    A(f's_lshl_b32 s{sT0}, s2, 6'); A(f's_add_u32 s{sT0}, s{sT0}, {WS_ML}')
    A('s_mov_b64 exec, 0xf')
    A.vmem(f'buffer_store_dwordx4 v[28:31], v{vV16}, s[{sWS}:{sWS+3}], s{sT0} offen {stflags}',certain=False)
    A('s_mov_b64 exec, -1')
    A.label(lab)
    A.nop(2)
    for i in range(8):
        for r in range(4):
            A(f'v_mul_f32 v{vO+4*i+r}, s{sH+r}, v{vO+4*i+r}')
    A(f's_lshl_b32 s{sT0}, s{sWAVE}, 11'); A(f's_add_u32 s{sT0}, s{sT0}, {L_OB}'); A(f'v_add_u32 v26, s{sT0}, v{vV16}')
    A('s_mov_b64 exec, 0xffff')
    for i in range(8): A(f'ds_write_b128 v26, v[{vO+4*i}:{vO+4*i+3}] offset:{i*256}')
    A('s_mov_b64 exec, -1')
    A('s_waitcnt lgkmcnt(0)'); A('s_barrier')
    lab=A.newlabel('Lpp')
    A(f's_cmp_ge_u32 s{sWAVE}, 4'); A(f's_cbranch_scc1 {lab}')
    A(f'v_and_b32 v26, 3, v{vL}'); A('v_lshlrev_b32 v26, 9, v26'); A(f'v_lshrrev_b32 v27, 2, v{vL}'); A('v_lshl_add_u32 v26, v27, 4, v26')
    A(f's_lshl_b32 s{sT0}, s{sWAVE}, 2'); A(f's_add_u32 s{sT0}, s{sT0}, {L_OB}'); A(f'v_add_u32 v26, s{sT0}, v26')
    for w in range(8): A(f'ds_read2st64_b32 v[{32+2*w}:{33+2*w}], v26 offset0:{8*w} offset1:{8*w+1}')
    A('s_waitcnt lgkmcnt(0)')
    for o in range(2):
        A(f'v_add_f32 v{32+o}, v{32+o}, v{34+o}'); A(f'v_add_f32 v{36+o}, v{36+o}, v{38+o}'); A(f'v_add_f32 v{40+o}, v{40+o}, v{42+o}'); A(f'v_add_f32 v{44+o}, v{44+o}, v{46+o}')
        A(f'v_add_f32 v{32+o}, v{32+o}, v{36+o}'); A(f'v_add_f32 v{40+o}, v{40+o}, v{44+o}')
    A('v_add_f32 v28, v32, v40'); A('v_add_f32 v30, v33, v41'); A(f'v_mov_b32 v29, s{sTAG}'); A(f'v_mov_b32 v31, s{sTAG}')
    A(f's_lshl_b32 s{sT0}, s2, 12'); A(f's_lshl_b32 s{sT1}, s{sWAVE}, 10'); A(f's_add_u32 s{sT0}, s{sT0}, s{sT1}'); A(f's_add_u32 s{sT0}, s{sT0}, {WS_PART}')
    A.vmem(f'buffer_store_dwordx4 v[28:31], v{vV16}, s[{sWS}:{sWS+3}], s{sT0} offen {stflags}',certain=False)
    A.label(lab)
    stamp(5)
    lab1=A.newlabel('Lh1')
    A(f's_cmp_lg_u32 s{sWAVE}, 0'); A(f's_cbranch_scc1 {lab1}')
    A(f'v_and_b32 v26, 31, v{vL}'); A('v_lshlrev_b32 v27, 6, v26'); A('v_lshlrev_b32 v26, 12, v26'); A(f'v_lshrrev_b32 v28, 5, v{vL}'); A('v_lshl_add_u32 v26, v28, 6, v26')
    A(f's_lshl_b32 s{sT0}, s{sG}, 17'); A(f's_lshl_b32 s{sT1}, s{sI}, 7'); A(f's_add_u32 s{sT0}, s{sT0}, s{sT1}'); A(f's_add_u32 s{sT0}, s{sT0}, {WS_PART}')
    A(f's_lshl_b32 s{sT1}, s{sG}, 11'); A(f's_lshr_b32 s{sT3}, s{sI}, 3'); A(f's_lshl_b32 s{sT3}, s{sT3}, 4'); A(f's_add_u32 s{sT1}, s{sT1}, s{sT3}'); A(f's_add_u32 s{sT1}, s{sT1}, {WS_ML}')
    A(f's_mov_b32 s{sCNT}, 0')
    poll=A.newlabel('Lp1');
    A.label(poll)
    A(f's_add_u32 s{sCNT}, s{sCNT}, 1'); A(f's_cmp_gt_u32 s{sCNT}, 0x8000'); A('s_cbranch_scc1 L_end')
    for k in range(4): A(f'buffer_load_dwordx4 v[{32+4*k}:{35+4*k}], v26, s[{sWS}:{sWS+3}], s{sT0} offen offset:{16*k} {pollflags}')
    A(f'buffer_load_dwordx4 v[48:51], v27, s[{sWS}:{sWS+3}], s{sT1} offen {pollflags}')
    A('s_waitcnt vmcnt(0)')
    tagcheck([32+4*k+o for k in range(5) for o in (1,3)],28,poll)
    stamp(6)
    A('v_mov_b32 v28, v48'); allred('max',28,29,bits=(0,1,2,3,4))
    A('v_sub_f32 v48, v48, v28'); A(f'v_mul_f32 v48, s{sLOG2E}, v48'); A('v_exp_f32 v48, v48'); A.nop(1)
    A('v_mul_f32 v50, v50, v48'); allred('add',50,29,bits=(0,1,2,3,4))
    vals=[32,34,36,38,40,42,44,46]
    for v in vals: A(f'v_mul_f32 v{v}, v{v}, v48')
    r=treduce(vals,(3,2,1),None)
    allred('add',r,29,bits=(0,4))
    A('v_rcp_f32 v29, v50'); A.nop(1)
    A(f'v_mul_f32 v28, v{r}, v29'); A(f'v_fma_f32 v30, -v28, v50, v{r}'); A('v_fma_f32 v28, v30, v29, v28')
    rne(28,28)
    A(f'v_lshrrev_b32 v24, 5, v{vL}'); A('v_lshlrev_b32 v24, 5, v24'); A(f'v_bfe_u32 v25, v{vL}, 1, 3'); A('v_lshl_add_u32 v24, v25, 2, v24')
    A(f'ds_write_b32 v24, v28 offset:{L_O16}')
    A('s_waitcnt lgkmcnt(0)')
    A.label(lab1)
    A('s_barrier')
    A('v_mov_b32 v24, 0')
    for k in range(4): A(f'ds_read_b128 v[{32+4*k}:{35+4*k}], v24 offset:{L_O16+16*k}')
    A('s_waitcnt vmcnt(0) lgkmcnt(0)')
    A(f'v_mul_f32 v28, v32, v{vR}')
    for r in range(1,16): A(f'v_fmac_f32 v28, v{32+r}, v{vR+r}')
    A.nop(2)
    A(f'v_mov_b32_dpp v30, v28 {dpp(XOR1)}')
    A(f'v_mov_b32 v29, s{sTAG}'); A(f'v_mov_b32 v31, s{sTAG}')
    A(f'v_lshlrev_b32 v26, 3, v{vL}')
    A(f's_lshl_b32 s{sT0}, s2, 12'); A(f's_lshl_b32 s{sT1}, s{sWAVE}, 9'); A(f's_add_u32 s{sT0}, s{sT0}, s{sT1}'); A(f's_add_u32 s{sT0}, s{sT0}, {WS_SP}')
    A('s_mov_b32 exec_lo, 0x55555555'); A('s_mov_b32 exec_hi, 0x55555555')
    A.vmem(f'buffer_store_dwordx4 v[28:31], v26, s[{sWS}:{sWS+3}], s{sT0} offen {stflags}',certain=False)
    A('s_mov_b64 exec, -1')
    stamp(7)
    A(f's_cmp_lg_u32 s{sWAVE}, 0'); A('s_cbranch_scc1 L_end')
    A(f'v_lshlrev_b32 v26, 12, v{vL}')
    A(f's_lshl_b32 s{sT0}, s2, 4')
    A(f's_mov_b32 s{sCNT}, 0')
    poll=A.newlabel('Lp2')
    A.label(poll)
    A(f's_add_u32 s{sCNT}, s{sCNT}, 1'); A(f's_cmp_gt_u32 s{sCNT}, 0x8000'); A('s_cbranch_scc1 L_end')
    for k in range(4):
        A(f's_add_u32 s{sT1}, s{sT0}, {WS_SP+k*64*4096}')
        A(f'buffer_load_dwordx4 v[{32+4*k}:{35+4*k}], v26, s[{sWS}:{sWS+3}], s{sT1} offen {pollflags}')
    for k in range(4):
        A(f's_add_u32 s{sT1}, s{sT0}, {WS_YP+k*64*4096}')
        if k==3:
            A(f'v_mov_b32 v60, 0'); A(f'v_mov_b32 v61, s{sTAG}'); A(f'v_mov_b32 v62, 0'); A(f'v_mov_b32 v63, s{sTAG}')
            A('s_mov_b32 exec_hi, 0')
        A(f'buffer_load_dwordx4 v[{48+4*k}:{51+4*k}], v26, s[{sWS}:{sWS+3}], s{sT1} offen {pollflags}')
        if k==3: A('s_mov_b64 exec, -1')
    A('s_waitcnt vmcnt(0)')
    tagcheck([32+4*k+o for k in range(8) for o in (1,3)],28,poll)
    stamp(8)
    for o in (0,2):
        A(f'v_add_f32 v{32+o}, v{32+o}, v{36+o}'); A(f'v_add_f32 v{40+o}, v{40+o}, v{44+o}'); A(f'v_add_f32 v{32+o}, v{32+o}, v{40+o}')
        A(f'v_add_f32 v{48+o}, v{48+o}, v{52+o}'); A(f'v_add_f32 v{56+o}, v{56+o}, v{60+o}'); A(f'v_add_f32 v{48+o}, v{48+o}, v{56+o}')
    for v in (32,34,48,50): allred('add',v,28)
    for (s,y,sh,o) in ((32,48,0,36),(34,50,1,37)):
        rne(s,s); rne(y,y)
        A(f'v_mul_f32 v28, 0xbfb8aa3b, v{y}'); A('v_exp_f32 v28, v28'); A.nop(1); A('v_add_f32 v28, 1.0, v28'); A('v_rcp_f32 v28, v28'); A.nop(1)
        A(f'v_mul_f32 v28, v{y}, v28'); rne(28,28)
        A(f'v_mul_f32 v28, v{s}, v28'); rne(28,28)
        if sh==0: A(f'v_lshlrev_b32 v29, 16, v{vEP}')
        else: A(f'v_and_b32 v29, s{sHI}, v{vEP}')
        A(f'v_add_f32 v{o}, v29, v28')
    A('v_cvt_pk_bf16_f32 v36, v36, v37')
    A(f's_lshl_b32 s{sT0}, s2, 2')
    A('s_mov_b64 exec, 1')
    A(f'buffer_store_dword v36, off, s[{sOUT}:{sOUT+3}], s{sT0}')
    lab=A.newlabel('Lep')
    A('s_cmp_lg_u32 s2, 0'); A(f's_cbranch_scc1 {lab}')
    A(f'v_mov_b32 v37, s{sTAG}')
    A(f'buffer_store_dword v37, off, s[{sWS}:{sWS+3}], 0 sc1')
    A.label(lab)
    A('s_mov_b64 exec, -1')
    stamp(9)
    A.label('L_end')
    A('s_endpgm')
    out=HDR+f'; @launch grid=(256,1,1) block=(512,1,1) lds={LDS_BYTES}\n'
    out+='.amdgcn_target "amdgcn-amd-amdhsa--gfx950"\n.text\n'+f'.globl {NAME}\n.p2align 8\n.type {NAME},@function\n{NAME}:\n'
    out+=A.text()
    out+=f'''.section .rodata,"a"
.p2align 6
.amdhsa_kernel {NAME}
  .amdhsa_next_free_vgpr 256
  .amdhsa_next_free_sgpr 102
  .amdhsa_accum_offset 256
  .amdhsa_group_segment_fixed_size 0
  .amdhsa_kernarg_size 96
  .amdhsa_user_sgpr_count 2
  .amdhsa_user_sgpr_kernarg_segment_ptr 1
  .amdhsa_system_sgpr_workgroup_id_x 1
.end_amdhsa_kernel
'''
    return out

if __name__=='__main__':
    out=sys.argv[1]
    kw=json.loads(sys.argv[2]) if len(sys.argv)>2 else {}
    open(out,'w').write(gen(**kw))
```

```python
import sys, json
sys.path.insert(0,'gen')
from asmlib import *

NAME='recurrent_scan__gqa_block_cached__glu_gated_geglu__decode_kernel'
REF=open('recurrent_scan__gqa_block_cached__glu_gated_geglu__decode.s.ref').read()
HDR=REF[:REF.index('; Override launch')]

WS_Q=0x1000; WS_ML=0x8000; WS_PART=0x10000; WS_SP=0x200000; WS_YP=0x300000; WS_STAMP=0x400000
WS_SIZE=0x1000000
L_XN=0; L_QP=8192; L_GU=8704; L_ML=9216; L_O16=9472; L_F=9600; L_FIN=9728; L_OB=16384; LDS_BYTES=32768
sK,sV,sWQ,sWO,sWG,sWU,sWD,sX,sOUT,sWS=28,32,36,40,44,48,52,56,60,64
sWAVE,sG,sI,sTAG,sKV,sT0,sPLO,sPHI,sSCALE,sLOG2E,sHI,sB=68,69,70,71,72,73,74,75,76,77,78,79
sH=80
sT1,sT2=88,89
sM=90
sCB=92; sQS=93
sCNT=94; sVALID=95
sST=96
sT3,sT4=98,99
vTID,vL,vKOFF,vV16,vMAX,vSUM,vMLOG,vM2=0,1,2,3,4,5,6,7
vX=8
vEP=12; vA=13; vB=14; vC=15
vQP=40
vQF=56
vS=64
vO=96
vR=128
RING=32
TMO=0x8000

def dpp(ctrl, bank=0xf, row=0xf): return f'{ctrl} row_mask:0x{row:x} bank_mask:0x{bank:x}'
XOR1='quad_perm:[1,0,3,2]'; XOR2='quad_perm:[2,3,0,1]'; HM='row_half_mirror'; RM='row_mirror'

def gen(W=4, BURST=4, QPOLL=18, QCHK=23, MLPLOAD=34, MLPROC=44, MLPOLL=90, MLCHK=100, WOLOAD=120, YLOAD=114, N2=32,
        diag=False, kflags='nt', wflags='nt', woflags='nt', pollflags='sc1', stflags='sc1', perload=1, HEADLOADS=1, HEADN=4, nomlp=False, nowo=False, nocomp=False, nohead=False, startbar=True):
    A=Asm()
    def stamp(k, wave=0):
        if not diag: return
        lab=A.newlabel('Lst')
        A(f's_cmp_lg_u32 s{sWAVE}, {wave}'); A(f's_cbranch_scc1 {lab}')
        A(f's_memrealtime s[{sST}:{sST+1}]'); A('s_waitcnt lgkmcnt(0)')
        A(f'v_mov_b32 v14, s{sST}'); A(f'v_mov_b32 v15, s{sST+1}')
        A(f's_lshl_b32 s{sT3}, s2, 8'); A(f's_add_u32 s{sT3}, s{sT3}, {WS_STAMP+8*k}')
        A(f's_mov_b64 s[100:101], exec'); A(f's_mov_b64 exec, 1')
        A(f'buffer_store_dwordx2 v[14:15], off, s[{sWS}:{sWS+3}], s{sT3}')
        A(f's_mov_b64 exec, s[100:101]')
        A.label(lab)
    def stamp_all(k):
        if not diag: return
        A(f's_memrealtime s[{sST}:{sST+1}]'); A('s_waitcnt lgkmcnt(0)')
        A(f'v_mov_b32 v14, s{sST}'); A(f'v_mov_b32 v15, s{sST+1}')
        A(f's_lshl_b32 s{sT3}, s2, 8'); A(f's_add_u32 s{sT3}, s{sT3}, {WS_STAMP+8*k}')
        A(f's_lshl_b32 s{sST}, s{sWAVE}, 3'); A(f's_add_u32 s{sT3}, s{sT3}, s{sST}')
        A(f's_mov_b64 s[100:101], exec'); A(f's_mov_b64 exec, 1')
        A(f'buffer_store_dwordx2 v[14:15], off, s[{sWS}:{sWS+3}], s{sT3}')
        A(f's_mov_b64 exec, s[100:101]')
    def allred(op, v, t, bits=(0,1,2,3,4,5)):
        ins={'add':'v_add_f32','max':'v_max_f32'}[op]
        m={0:XOR1,1:XOR2,2:HM,3:RM}
        for b in bits:
            if b<4:
                A.nop(2)
                A(f'{ins}_dpp v{v}, v{v}, v{v} {dpp(m[b])}')
            else:
                A(f'v_mov_b32 v{t}, v{v}')
                A.nop(2)
                A(f'v_permlane{16 if b==4 else 32}_swap_b32 v{v}, v{t}')
                A(f'{ins} v{v}, v{v}, v{t}')
    def allred2(op, vs, ts, bits):
        ins={'add':'v_add_f32','max':'v_max_f32'}[op]
        m={0:XOR1,1:XOR2,2:HM,3:RM}
        n=len(vs)
        for b in bits:
            if isinstance(b,str) or b<4:
                ctrl=b if isinstance(b,str) else m[b]
                A.nop(max(0,3-n) if n>1 else 2)
                if n>=3: pass
                for v in vs: A(f'{ins}_dpp v{v}, v{v}, v{v} {dpp(ctrl)}')
            else:
                for v,t in zip(vs,ts): A(f'v_mov_b32 v{t}, v{v}')
                A.nop(2 if n==1 else (1 if n==2 else 0)+0)
                if n==2: A.nop(1)
                for v,t in zip(vs,ts): A(f'v_permlane{16 if b==4 else 32}_swap_b32 v{v}, v{t}')
                for v,t in zip(vs,ts): A(f'{ins} v{v}, v{v}, v{t}')
    def treduce(vals, bits):
        vals=list(vals)
        for b in bits:
            n=len(vals)//2
            lo,hi=vals[:n],vals[n:]
            if b in (3,2):
                ctrl=RM if b==3 else HM
                m0,m1=(0x3,0xC) if b==3 else (0x5,0xA)
                A.nop(2)
                for k in range(n):
                    A(f'v_add_f32_dpp v{lo[k]}, v{lo[k]}, v{lo[k]} {dpp(ctrl,bank=m0)}')
                for k in range(n):
                    A(f'v_add_f32_dpp v{lo[k]}, v{hi[k]}, v{hi[k]} {dpp(ctrl,bank=m1)}')
            else:
                ctrl=XOR2 if b==1 else XOR1
                mask=0xCCCCCCCC if b==1 else 0xAAAAAAAA
                A(f's_mov_b32 s{sM}, 0x{mask:x}'); A(f's_mov_b32 s{sM+1}, 0x{mask:x}')
                for k in range(n):
                    A(f'v_add_f32_dpp v{lo[k]}, v{lo[k]}, v{lo[k]} {dpp(ctrl)}')
                    A(f'v_add_f32_dpp v{hi[k]}, v{hi[k]}, v{hi[k]} {dpp(ctrl)}')
                for k in range(n):
                    A(f'v_cndmask_b32 v{lo[k]}, v{lo[k]}, v{hi[k]}, s[{sM}:{sM+1}]')
            vals=lo
        return vals[0]
    def rne(dst, src):
        A(f'v_cvt_pk_bf16_f32 v{dst}, v{src}, v{src}')
        A(f'v_and_b32 v{dst}, s{sHI}, v{dst}')
    def tagcheck(regs, t, retry):
        A(f'v_xor_b32 v{t}, s{sTAG}, v{regs[0]}')
        for r in regs[1:]:
            A(f'v_xor_b32 v{t+1}, s{sTAG}, v{r}')
            A(f'v_or_b32 v{t}, v{t}, v{t+1}')
        A(f'v_cmp_ne_u32 vcc, 0, v{t}')
        A('s_cmp_lg_u64 vcc, 0')
        A(f's_cbranch_scc1 {retry}')
    def ws(n=4): return f's[{sWS}:{sWS+3}]'
    def timeout():
        A(f's_add_u32 s{sCNT}, s{sCNT}, 1'); A(f's_cmp_gt_u32 s{sCNT}, {TMO}'); A('s_cbranch_scc1 L_end')
    def ifwave(cond, k):
        lab=A.newlabel('Lw')
        inv={'eq':'lg','lt':'ge','ge':'lt'}[cond]
        A(f's_cmp_{inv}_u32 s{sWAVE}, {k}'); A(f's_cbranch_scc1 {lab}')
        return lab

    A('s_cmp_ge_u32 s2, 256'); A('s_cbranch_scc1 L_end')
    A('s_load_dwordx16 s[4:19], s[0:1], 0'); A('s_load_dwordx8 s[20:27], s[0:1], 64')
    if diag: A(f's_memrealtime s[{sST}:{sST+1}]')
    A(f'v_and_b32 v{vL}, 63, v0'); A(f'v_lshrrev_b32 v7, 6, v0'); A.nop(1); A(f'v_readfirstlane_b32 s{sWAVE}, v7')
    A(f's_lshr_b32 s{sG}, s2, 5'); A(f's_and_b32 s{sI}, s2, 31')
    A(f's_mov_b32 s{sPLO}, 0x05040100'); A(f's_mov_b32 s{sPHI}, 0x07060302')
    A(f's_mov_b32 s{sSCALE}, 0x3db504f3'); A(f's_mov_b32 s{sLOG2E}, 0x3fb8aa3b'); A(f's_mov_b32 s{sHI}, 0xffff0000')
    A(f'v_lshlrev_b32 v{vV16}, 4, v{vL}')
    A(f'v_and_b32 v{vKOFF}, 3, v{vL}'); A(f'v_lshlrev_b32 v{vKOFF}, 10, v{vKOFF}')
    A(f'v_bfe_u32 v7, v{vL}, 2, 1'); A(f'v_lshl_add_u32 v{vKOFF}, v7, 8, v{vKOFF}')
    A(f'v_lshrrev_b32 v7, 3, v{vL}'); A(f'v_lshl_add_u32 v{vKOFF}, v7, 4, v{vKOFF}')
    A(f'v_and_b32 v{vB}, 31, v{vL}'); A(f'v_lshlrev_b32 v{vB}, 14, v{vB}'); A(f'v_lshrrev_b32 v7, 5, v{vL}'); A(f'v_lshl_add_u32 v{vB}, v7, 4, v{vB}')
    A(f'v_lshlrev_b32 v{vA}, 2, v{vL}')
    A('v_mov_b32 v8, 0')
    A(f's_lshl_b32 s{sKV}, s{sG}, 24'); A(f's_lshl_b32 s{sT0}, s{sI}, 3'); A(f's_add_u32 s{sT0}, s{sT0}, s{sWAVE}')
    A(f's_lshl_b32 s{sT0}, s{sT0}, 13'); A(f's_add_u32 s{sKV}, s{sKV}, s{sT0}')
    A(f's_and_b32 s{sT0}, s2, 7'); A(f's_lshr_b32 s{sT1}, s2, 6'); A(f's_lshl_b32 s{sT1}, s{sT1}, 3'); A(f's_add_u32 s{sT0}, s{sT0}, s{sT1}')
    A(f's_cmp_lt_u32 s{sT0}, 28'); A(f's_cselect_b32 s{sVALID}, 1, 0'); A(f's_cselect_b32 s{sT0}, s{sT0}, 0')
    A(f's_lshl_b32 s{sT0}, s{sT0}, 3'); A(f's_lshr_b32 s{sT1}, s2, 3'); A(f's_and_b32 s{sT1}, s{sT1}, 7'); A(f's_add_u32 s{sB}, s{sT0}, s{sT1}')
    A(f's_and_b32 s{sT0}, s{sI}, 7'); A(f's_lshl_b32 s{sT0}, s{sT0}, 2'); A(f's_lshr_b32 s{sT1}, s{sI}, 3'); A(f's_add_u32 s{sCB}, s{sT0}, s{sT1}')
    A(f's_lshl_b32 s{sT0}, s{sCB}, 5'); A(f's_lshl_b32 s{sT1}, s{sG}, 10'); A(f's_add_u32 s{sT0}, s{sT0}, s{sT1}')
    A(f's_lshl_b32 s{sQS}, s{sG}, 11'); A(f's_add_u32 s{sQS}, s{sQS}, {WS_Q}')
    A('s_waitcnt lgkmcnt(0)')
    if diag: A(f's_memrealtime s[14:15]')
    def mksrd(d,p,sz):
        A(f's_mov_b32 s{d}, s{p}'); A(f's_mov_b32 s{d+1}, s{p+1}'); A(f's_mov_b32 s{d+2}, 0x{sz:x}'); A(f's_mov_b32 s{d+3}, 0x00020000')
    mksrd(sX,4,1024); mksrd(sWQ,10,4<<20); mksrd(sWS,26,WS_SIZE)
    A(f's_load_dword s{sTAG}, s[26:27], 0')
    labh=ifwave('eq',0)
    A(f'buffer_load_dwordx4 v[{vX}:{vX+3}], v{vV16}, s[{sX}:{sX+3}], 0 offen')
    if not nohead:
        for k in range(8):
            A(f's_add_u32 s{sT1}, s{sT0}, {k*64*8192}')
            A(f'buffer_load_dwordx4 v[{64+8*k}:{67+8*k}], v{vB}, s[{sWQ}:{sWQ+3}], s{sT1} offen {wflags}')
            A(f's_add_u32 s{sT1}, s{sT0}, {k*64*8192+8192}')
            A(f'buffer_load_dwordx4 v[{68+8*k}:{71+8*k}], v{vB}, s[{sWQ}:{sWQ+3}], s{sT1} offen {wflags}')
    A.label(labh)
    mksrd(sK,6,128<<20)
    if startbar: A('s_barrier')

    NL=128
    state={'i':0}
    hooks={}
    def kv_load(idx):
        isK=idx<64; t=(idx%64)//8; e=idx%8
        slot=idx%RING; r=vR+4*slot
        if e%4==0:
            off=t*(256*8192)+(e//4)*4096
            A(f's_add_u32 s{sT2}, s{sKV}, 0x{off:x}')
        if isK:
            q=e%4; imm=(q//2)*512+(q%2)*128
            A.vmem(f'buffer_load_dwordx4 v[{r}:{r+3}], v{vKOFF}, s[{sK}:{sK+3}], s{sT2} offen offset:{imm} {kflags}',('kv',idx))
        else:
            imm=(e%4)*1024
            A.vmem(f'buffer_load_dwordx4 v[{r}:{r+3}], v{vV16}, s[{sV}:{sV+3}], s{sT2} offen offset:{imm} {kflags}',('kv',idx))
    def issue_next(window=True, w0skip=False):
        i=state['i']
        if window and i>=W:
            if w0skip:
                lab=A.newlabel('Lsk')
                A(f's_cmp_eq_u32 s{sWAVE}, 0'); A(f's_cbranch_scc1 {lab}')
                A.vmwait(('kv',i-W))
                A.label(lab)
            else:
                A.vmwait(('kv',i-W))
        kv_load(i)
        state['i']=i+1
        if i+1 in hooks: hooks[i+1]()
    for _ in range(BURST): issue_next(window=False)
    mksrd(sV,8,128<<20); mksrd(sWO,12,4<<20); mksrd(sWG,16,512*1792*2); mksrd(sWU,18,512*1792*2); mksrd(sWD,20,512*1792*2); mksrd(sOUT,22,1024)
    if diag:
        lab=ifwave('eq',0)
        A(f'v_mov_b32 v14, s{sST}'); A(f'v_mov_b32 v15, s{sST+1}')
        A(f's_lshl_b32 s{sT3}, s2, 8'); A(f's_add_u32 s{sT3}, s{sT3}, {WS_STAMP}')
        A(f's_mov_b64 exec, 1'); A(f'buffer_store_dwordx2 v[14:15], off, {ws()}, s{sT3}')
        A('s_waitcnt lgkmcnt(0)'); A('v_mov_b32 v16, s14'); A('v_mov_b32 v17, s15'); A(f'buffer_store_dwordx2 v[16:17], off, {ws()}, s{sT3} offset:112')
        A(f's_mov_b64 exec, -1')
        A.label(lab)

    A('s_waitcnt lgkmcnt(0)'); A(f's_add_u32 s{sTAG}, s{sTAG}, 0x9e3779b9')
    def w0(fn):
        def f():
            if nohead: return
            lab=ifwave('eq',0); fn(); A.label(lab)
        return f
    def nafter():
        return len(A.vm)
    def c_ln1():
        A.c('layernorm 1')
        A(f's_waitcnt vmcnt({16+nafter()})'); stamp(10)
        for k in range(4):
            A(f'v_lshlrev_b32 v{16+2*k}, 16, v{vX+k}'); A(f'v_and_b32 v{17+2*k}, s{sHI}, v{vX+k}')
        A('v_readfirstlane_b32 s14, v16')
        A.nop(2)
        for k in range(8): A(f'v_subrev_f32 v{28+k}, s14, v{16+k}')
        A('v_add_f32 v24, v28, v29'); A('v_mul_f32 v25, v28, v28'); A('v_add_f32 v26, v30, v31'); A('v_mul_f32 v27, v29, v29')
        A('v_add_f32 v24, v24, v32'); A('v_fmac_f32 v25, v30, v30'); A('v_add_f32 v26, v26, v33'); A('v_fmac_f32 v27, v31, v31')
        A('v_add_f32 v24, v24, v34'); A('v_fmac_f32 v25, v32, v32'); A('v_add_f32 v26, v26, v35'); A('v_fmac_f32 v27, v33, v33')
        A('v_fmac_f32 v25, v34, v34'); A('v_add_f32 v24, v24, v26'); A('v_fmac_f32 v27, v35, v35')
        A('v_add_f32 v25, v25, v27')
        A.nop(1)
        allred2('add',[24,25],[26,27],(0,1,2,3,4,5))
        A('v_mul_f32 v24, 0x3b000000, v24'); A('v_mul_f32 v25, 0x3b000000, v25')
        A('v_fma_f32 v25, -v24, v24, v25'); A('v_max_f32 v25, 0, v25')
        A('v_add_f32 v24, s14, v24')
    def c_ln3():
        A('v_cvt_pk_bf16_f32 v26, v24, v25')
        A('v_lshlrev_b32 v24, 16, v26'); A(f'v_and_b32 v25, s{sHI}, v26')
        A('v_add_f32 v25, 0x3727c5ac, v25'); rne(25,25)
        A('v_sqrt_f32 v25, v25')
        for k in range(4):
            A(f'v_sub_f32 v{28+2*k}, v{16+2*k}, v24'); A(f'v_sub_f32 v{29+2*k}, v{17+2*k}, v24')
        rne(25,25)
        A('v_rcp_f32 v26, v25')
        for k in range(4):
            A(f'v_cvt_pk_bf16_f32 v{36+k}, v{28+2*k}, v{29+2*k}')
        for k in range(4):
            A(f'v_lshlrev_b32 v{28+2*k}, 16, v{36+k}'); A(f'v_and_b32 v{29+2*k}, s{sHI}, v{36+k}')
        for k in range(8): A(f'v_mul_f32 v{16+k}, v{28+k}, v26')
        for k in range(8): A(f'v_fma_f32 v{28+k}, -v{16+k}, v25, v{28+k}')
        for k in range(8): A(f'v_fma_f32 v{16+k}, v{28+k}, v26, v{16+k}')
        for k in range(4): A(f'v_cvt_pk_bf16_f32 v{vX+k}, v{16+2*k}, v{17+2*k}')
        A(f'ds_write_b128 v{vV16}, v[{vX}:{vX+3}] offset:{L_XN}')
        A(f'v_and_b32 v17, 31, v{vL}'); A(f'v_lshlrev_b32 v17, 2, v17')
        for k in range(4): A(f'ds_read2_b32 v[{16+2*k+2}:{17+2*k+2}], v17 offset0:{64*k} offset1:{64*k+32}') if False else None
        for k in range(4): A(f'ds_read2_b32 v[{40+2*k}:{41+2*k}], v17 offset0:{64*k} offset1:{64*k+32}')
    def c_q():
        A.c('q gemv'); stamp(13)
        A(f's_waitcnt vmcnt({nafter()})'); stamp(12)
        A('s_waitcnt lgkmcnt(0)')
        for k in range(8):
            for j in range(4):
                A(f'v_perm_b32 v{16+2*j}, v{68+8*k+j}, v{64+8*k+j}, s{sPLO}'); A(f'v_perm_b32 v{17+2*j}, v{68+8*k+j}, v{64+8*k+j}, s{sPHI}')
            for c in range(8):
                if k==0: A(f'v_dot2_f32_bf16 v{32+c}, v{16+c}, v40, 0')
                else: A(f'v_dot2c_f32_bf16 v{32+c}, v{16+c}, v{40+k}')
        A.nop(1)
        r=treduce([32+k for k in range(8)],(3,2,1))
        allred('add',r,24,bits=(0,4))
        A.nop(2); A(f'v_mov_b32_dpp v25, v{r} {dpp(XOR2)}')
        A(f'v_cvt_pk_bf16_f32 v24, v{r}, v25')
        A.nop(2); A(f'v_mov_b32_dpp v26, v24 {dpp("row_shl:4")}')
        A(f'v_mov_b32 v25, s{sTAG}'); A(f'v_mov_b32 v27, s{sTAG}')
        A(f'v_lshrrev_b32 v28, 5, v{vL}'); A(f'v_lshlrev_b32 v28, 5, v28'); A(f'v_bfe_u32 v29, v{vL}, 3, 1'); A(f'v_lshl_add_u32 v28, v29, 4, v28')
        A(f's_lshl_b32 s{sT0}, s{sCB}, 6'); A(f's_add_u32 s{sT0}, s{sT0}, s{sQS}')
        A('s_mov_b32 exec_lo, 0x101'); A('s_mov_b32 exec_hi, 0x101')
        A(f'buffer_store_dwordx4 v[24:27], v28, {ws()}, s{sT0} offen {stflags}')
        A('s_mov_b64 exec, -1')
        stamp(1)
    def c_tag():
        A(f'v_and_b32 v21, 3, v{vL}'); A(f'v_lshlrev_b32 v21, 9, v21'); A(f'v_lshrrev_b32 v22, 4, v{vL}'); A(f'v_lshl_add_u32 v21, v22, 6, v21')
        A(f'v_bfe_u32 v22, v{vL}, 2, 1'); A(f'v_lshl_add_u32 v{vEP}, v22, 5, v21')
        A(f'v_mov_b32 v{vMAX}, 0xff800000'); A(f'v_mov_b32 v{vSUM}, 0')
    def q_poll_issue(track=True):
        if nohead: return
        for k in range(4):
            s=f'buffer_load_dwordx4 v[{vQP+4*k}:{vQP+4*k+3}], v{vEP}, {ws()}, s{sQS} offen offset:{(k//2)*256+(k%2)*16} {pollflags}'
            if track: A.vmem(s,('qp',k))
            else: A(s)
    def q_check():
        if nohead: return
        retry=A.newlabel('Lqr'); ok=A.newlabel('Lqok'); chk=A.newlabel('Lqc')
        A.vmwait(('qp',3))
        A(f's_mov_b32 s{sCNT}, 0')
        A.label(chk)
        tagcheck([vQP+4*k+o for k in range(4) for o in (1,3)],24,retry)
        A(f's_branch {ok}')
        A.label(retry); timeout(); q_poll_issue(False); A('s_waitcnt vmcnt(0)'); A(f's_branch {chk}')
        A.label(ok)
        for k in range(4):
            A(f'v_mov_b32 v{vQF+2*k}, v{vQP+4*k}'); A(f'v_mov_b32 v{vQF+2*k+1}, v{vQP+4*k+2}')
        A.nop(2)
        stamp(2)
    def mlp_load():
        if nomlp: return
        A.c('mlp loads')
        A(f'v_mul_u32_u24 v{vC}, 3584, v{vL}')
        A(f's_mul_i32 s{sT0}, s{sWAVE}, 229376'); A(f's_lshl_b32 s{sT1}, s{sB}, 4'); A(f's_add_u32 s{sT0}, s{sT0}, s{sT1}')
        A.vmem(f'buffer_load_dwordx4 v[104:107], v{vC}, s[{sWG}:{sWG+3}], s{sT0} offen {wflags}','wg')
        A.vmem(f'buffer_load_dwordx4 v[108:111], v{vC}, s[{sWU}:{sWU+3}], s{sT0} offen {wflags}','wu')
        lab=ifwave('lt',4)
        A(f's_lshl_b32 s{sT0}, s{sB}, 13'); A(f's_lshl_b32 s{sT1}, s{sWAVE}, 8'); A(f's_add_u32 s{sT0}, s{sT0}, s{sT1}'); A(f's_add_u32 s{sT1}, s{sT0}, 4096')
        for r in range(8):
            A.vmem(f'buffer_load_dword v{112+r}, v{vA}, s[{sWD}:{sWD+3}], s{sT0 if r<4 else sT1} offen offset:{(r%4)*1024} {woflags}','wd',certain=False)
        A.label(lab)
    def mlp_part():
        if nomlp: return
        A.c('gate/up partial')
        A(f's_lshl_b32 s{sT0}, s{sWAVE}, 7')
        A(f'v_lshlrev_b32 v18, 1, v{vL}'); A(f'v_add_u32 v18, s{sT0}, v18')
        A(f'ds_read_u16 v20, v18 offset:{L_XN}'); A.vmwait('wu'); A('s_waitcnt lgkmcnt(0)')
        A('v_lshlrev_b32 v21, 16, v20')
        for m,base in ((0,104),(1,108)):
            for j in range(4):
                A(f'v_dot2_f32_bf16 v{24+8*m+2*j}, v{base+j}, v20, 0')
                A(f'v_dot2_f32_bf16 v{25+8*m+2*j}, v{base+j}, v21, 0')
        A.nop(1)
        r=treduce([24+k for k in range(16)],(3,2,1,0))
        allred('add',r,22,bits=(4,5))
        A(f'v_and_b32 v22, 15, v{vL}'); A(f'v_lshlrev_b32 v22, 2, v22')
        A(f's_lshl_b32 s{sT0}, s{sWAVE}, 6'); A(f's_add_u32 s{sT0}, s{sT0}, {L_GU}'); A(f'v_add_u32 v22, s{sT0}, v22')
        A(f'ds_write_b32 v22, v{r}')
    def mlp_fin():
        lab=ifwave('lt',4)
        A(f's_cmp_eq_u32 s{sVALID}, 0'); A(f's_cbranch_scc1 {lab}')
        A(f'v_and_b32 v22, 15, v{vL}'); A(f'v_lshlrev_b32 v22, 2, v22'); A(f'v_add_u32 v22, {L_GU}, v22')
        for k in range(4): A(f'ds_read2_b32 v[{24+2*k}:{25+2*k}], v22 offset0:{32*k} offset1:{32*k+16}')
        A('s_waitcnt lgkmcnt(0)')
        A('v_add_f32 v24, v24, v25'); A('v_add_f32 v26, v26, v27'); A('v_add_f32 v28, v28, v29'); A('v_add_f32 v30, v30, v31')
        A('v_add_f32 v24, v24, v26'); A('v_add_f32 v28, v28, v30'); A('v_add_f32 v24, v24, v28')
        rne(24,24)
        A('v_mul_f32 v25, v24, v24'); A('v_mul_f32 v25, v25, v24'); A('v_mov_b32 v26, 0x3d372713'); A('v_fma_f32 v25, v25, v26, v24')
        A('v_mul_f32 v25, 0xc0135761, v25'); A('v_exp_f32 v25, v25'); A.nop(1)
        A('v_add_f32 v25, 1.0, v25'); A('v_rcp_f32 v25, v25'); A.nop(1)
        A('v_mul_f32 v25, v24, v25'); rne(25,25)
        A.nop(2); A(f'v_mov_b32_dpp v26, v24 {dpp("row_shl:8")}')
        A('v_mul_f32 v25, v25, v26'); rne(25,25); A.nop(1)
        for r in range(8): A(f'v_readlane_b32 s{sH+r}, v25, {r}')
        A('v_mov_b32 v24, 0'); A('v_mov_b32 v26, 0')
        for r in range(8):
            A(f'v_lshlrev_b32 v28, 16, v{112+r}'); A(f'v_and_b32 v29, s{sHI}, v{112+r}')
            A(f'v_fmac_f32 v24, s{sH+r}, v28'); A(f'v_fmac_f32 v26, s{sH+r}, v29')
        A(f'v_mov_b32 v25, s{sTAG}'); A(f'v_mov_b32 v27, s{sTAG}')
        A(f's_lshl_b32 s{sT0}, s{sB}, 12'); A(f's_lshl_b32 s{sT1}, s{sWAVE}, 10'); A(f's_add_u32 s{sT0}, s{sT0}, s{sT1}'); A(f's_add_u32 s{sT0}, s{sT0}, {WS_YP}')
        A.vmem(f'buffer_store_dwordx4 v[24:27], v{vV16}, {ws()}, s{sT0} offen {stflags}',certain=False)
        A.label(lab)
    def k_chunk(T,a):
        if nocomp: return
        base=8*T+4*a
        R=[vR+4*((base+e)%RING) for e in range(4)]
        DA,DB=16,20
        A(f'v_mfma_f32_16x16x32_bf16 v[{DA}:{DA+3}], v[{R[0]}:{R[0]+3}], v[{vQF}:{vQF+3}], 0')
        A(f'v_mfma_f32_16x16x32_bf16 v[{DB}:{DB+3}], v[{R[2]}:{R[2]+3}], v[{vQF}:{vQF+3}], 0')
        A(f'v_mfma_f32_16x16x32_bf16 v[{DA}:{DA+3}], v[{R[1]}:{R[1]+3}], v[{vQF+4}:{vQF+7}], v[{DA}:{DA+3}]')
        A(f'v_mfma_f32_16x16x32_bf16 v[{DB}:{DB+3}], v[{R[3]}:{R[3]+3}], v[{vQF+4}:{vQF+7}], v[{DB}:{DB+3}]')
        A.nop(8)
        for r in range(4): A(f'v_permlane32_swap_b32 v{DA+r}, v{DB+r}')
        for r in range(4): A(f'v_add_f32_dpp v{24+r}, v{DB+r}, v{DA+r} row_shl:4 row_mask:0xf bank_mask:0xf bound_ctrl:0')
        A(f'v_max3_f32 v{vMAX}, v24, v25, v{vMAX}'); A(f'v_max3_f32 v{vMAX}, v26, v27, v{vMAX}')
        A('v_cvt_pk_bf16_f32 v28, v24, v25'); A('v_cvt_pk_bf16_f32 v29, v26, v27')
        A('v_lshlrev_b32 v24, 16, v28'); A(f'v_and_b32 v25, s{sHI}, v28'); A('v_lshlrev_b32 v26, 16, v29'); A(f'v_and_b32 v27, s{sHI}, v29')
        for r in range(4): A(f'v_mul_f32 v{24+r}, s{sSCALE}, v{24+r}')
        d=vS+4*T+2*a
        A(f'v_cvt_pk_bf16_f32 v{d}, v24, v25'); A(f'v_cvt_pk_bf16_f32 v{d+1}, v26, v27')
    def maxfin():
        allred('max',vMAX,24,bits=(4,5))
        rne(vM2,vMAX); A(f'v_mul_f32 v{vM2}, s{sSCALE}, v{vM2}'); rne(vM2,vM2)
        A(f'v_mul_f32 v{vMLOG}, s{sLOG2E}, v{vM2}')
        stamp(3)
        stamp_all(24)
    def v_exp(U):
        if nocomp: return
        s=vS+4*U
        for k in range(4):
            A(f'v_lshlrev_b32 v{24+2*k}, 16, v{s+k}'); A(f'v_and_b32 v{25+2*k}, s{sHI}, v{s+k}')
        for k in range(8): A(f'v_fma_f32 v{24+k}, v{24+k}, s{sLOG2E}, -v{vMLOG}')
        for k in range(8): A(f'v_exp_f32 v{24+k}, v{24+k}')
        A.nop(1)
        for k in range(4): A(f'v_cvt_pk_bf16_f32 v{s+k}, v{24+2*k}, v{25+2*k}')
        A('v_add_f32 v24, v24, v25'); A('v_add_f32 v26, v26, v27'); A('v_add_f32 v28, v28, v29'); A('v_add_f32 v30, v30, v31')
        A('v_add_f32 v24, v24, v26'); A('v_add_f32 v28, v28, v30'); A('v_add_f32 v24, v24, v28'); A(f'v_add_f32 v{vSUM}, v{vSUM}, v24')
    def transition():
        A.c('transition: per-wave m,l -> LDS ; barrier ; WG-level m,l publish ; MLP finish')
        allred('add',vSUM,24,bits=(4,5))
        A(f'v_mov_b32 v24, v{vM2}'); A(f'v_mov_b32 v25, v{vSUM}')
        A(f's_lshl_b32 s{sT0}, s{sWAVE}, 5'); A(f's_add_u32 s{sT0}, s{sT0}, {L_ML}')
        A(f'v_lshlrev_b32 v26, 3, v{vL}'); A(f'v_add_u32 v26, s{sT0}, v26')
        A('s_mov_b64 exec, 0xf'); A('ds_write_b64 v26, v[24:25]'); A('s_mov_b64 exec, -1')
        A('s_waitcnt lgkmcnt(0)'); A('s_barrier')
        lab=ifwave('eq',4)
        A(f'v_and_b32 v26, 31, v{vL}'); A(f'v_lshlrev_b32 v26, 3, v26')
        A(f'ds_read_b64 v[24:25], v26 offset:{L_ML}'); A('s_waitcnt lgkmcnt(0)')
        A('v_mov_b32 v27, v24')
        A.nop(2); A(f'v_max_f32_dpp v27, v27, v27 {dpp("row_ror:4")}')
        A.nop(2); A(f'v_max_f32_dpp v27, v27, v27 {dpp("row_ror:8")}')
        allred('max',27,28,bits=(4,))
        A('v_sub_f32 v24, v24, v27'); A(f'v_mul_f32 v24, s{sLOG2E}, v24'); A('v_exp_f32 v24, v24'); A.nop(1)
        A('v_mul_f32 v25, v25, v24')
        A.nop(2); A(f'v_add_f32_dpp v25, v25, v25 {dpp("row_ror:4")}')
        A.nop(2); A(f'v_add_f32_dpp v25, v25, v25 {dpp("row_ror:8")}')
        allred('add',25,28,bits=(4,))
        A(f'v_mov_b32 v28, v27'); A(f'v_mov_b32 v29, s{sTAG}'); A(f'v_mov_b32 v30, v25'); A(f'v_mov_b32 v31, s{sTAG}')
        A(f's_lshl_b32 s{sT0}, s2, 6'); A(f's_add_u32 s{sT0}, s{sT0}, {WS_ML}')
        A('s_mov_b64 exec, 0xf')
        A.vmem(f'buffer_store_dwordx4 v[28:31], v{vV16}, {ws()}, s{sT0} offen {stflags}',certain=False)
        A('s_mov_b64 exec, -1')
        A.label(lab)
        mlp_fin()
        stamp(11)
    def ml_poll_issue(track=True):
        lab=ifwave('eq',5) if track else None
        A(f's_lshl_b32 s{sT0}, s{sG}, 11'); A(f's_add_u32 s{sT0}, s{sT0}, {WS_ML}')
        for k in range(2):
            A(f'buffer_load_dwordx4 v[{32+4*k}:{35+4*k}], v{vV16}, {ws()}, s{sT0} offen offset:{k*1024} {pollflags}')
        if track: A.label(lab)
    def ml_check():
        assert MLPOLL+W+1<=state['i']<=YLOAD, state['i']
        lab=ifwave('eq',5)
        retry=A.newlabel('Lmr'); ok=A.newlabel('Lmok'); chk=A.newlabel('Lmc')
        A(f's_mov_b32 s{sCNT}, 0')
        A.label(chk)
        tagcheck([33,35,37,39],24,retry)
        A(f's_branch {ok}')
        A.label(retry); timeout(); ml_poll_issue(False); A('s_waitcnt vmcnt(0)'); A(f's_branch {chk}')
        A.label(ok)
        A('v_max_f32 v24, v32, v36')
        A.nop(2); A(f'v_max_f32_dpp v24, v24, v24 {dpp("row_ror:4")}')
        A.nop(2); A(f'v_max_f32_dpp v24, v24, v24 {dpp("row_ror:8")}')
        allred('max',24,25,bits=(4,5))
        A('v_sub_f32 v32, v32, v24'); A('v_sub_f32 v36, v36, v24'); A(f'v_mul_f32 v32, s{sLOG2E}, v32'); A(f'v_mul_f32 v36, s{sLOG2E}, v36')
        A('v_exp_f32 v32, v32'); A('v_exp_f32 v36, v36'); A.nop(1)
        A('v_mul_f32 v34, v34, v32'); A('v_fmac_f32 v34, v38, v36')
        A.nop(2); A(f'v_add_f32_dpp v34, v34, v34 {dpp("row_ror:4")}')
        A.nop(2); A(f'v_add_f32_dpp v34, v34, v34 {dpp("row_ror:8")}')
        allred('add',34,25,bits=(4,5))
        A(f'v_and_b32 v26, 31, v{vL}'); A(f'v_lshlrev_b32 v27, 3, v26')
        A(f'ds_read_b32 v28, v27 offset:{L_ML}')
        A('v_rcp_f32 v29, v34'); A('s_waitcnt lgkmcnt(0)')
        A('v_sub_f32 v28, v28, v24'); A(f'v_mul_f32 v28, s{sLOG2E}, v28'); A('v_exp_f32 v28, v28')
        A('v_fma_f32 v30, -v29, v34, 1.0'); A('v_fma_f32 v29, v30, v29, v29')
        A('v_mul_f32 v28, v28, v29')
        A('v_lshlrev_b32 v27, 2, v26')
        A(f'ds_write_b32 v27, v28 offset:{L_F}')
        A.label(lab)
    def v_pv(U,jp):
        if nocomp: return
        R=[vR+4*((64+8*U+t)%RING) for t in range(8)]
        P=vS+4*U
        for jj in range(2):
            j=2*jp+jj
            Fb=16 if jj==0 else 24
            for hi in range(2):
                for u in range(4):
                    A(f'v_perm_b32 v{Fb+4*hi+u}, v{R[2*u+1]+j}, v{R[2*u]+j}, s{sPHI if hi else sPLO}')
            if jj==1: A.nop(2)
        for jj in range(2):
            j=2*jp+jj; Fb=16 if jj==0 else 24
            for hi in range(2):
                i=2*j+hi; fr=Fb+4*hi; D=vO+4*i
                c='0' if U==0 else f'v[{D}:{D+3}]'
                A(f'v_mfma_f32_16x16x32_bf16 v[{D}:{D+3}], v[{P}:{P+3}], v[{fr}:{fr+3}], {c}')
    def wo_load():
        if nowo: return
        A.c('wo loads')
        for r in range(16): A(f'v_mov_b32 v{vQP+r}, 0')
        A(f'v_lshlrev_b32 v{vA}, 1, v{vL}')
        A(f's_lshl_b32 s{sT0}, s{sG}, 19'); A(f's_lshl_b32 s{sT1}, s{sI}, 14'); A(f's_add_u32 s{sT0}, s{sT0}, s{sT1}')
        A(f's_lshl_b32 s{sT1}, s{sWAVE}, 7'); A(f's_add_u32 s{sT0}, s{sT0}, s{sT1}')
        for r in range(16):
            if r%4==0 and r>0: A(f's_add_u32 s{sT0}, s{sT0}, 4096')
            A.vmem(f'buffer_load_short_d16_hi v{vQP+r}, v{vA}, s[{sWO}:{sWO+3}], s{sT0} offen offset:{(r%4)*1024} {woflags}','wo')


    UPC=256//N2; PPI=64//UPC; NI=32//PPI
    YR=[32,36,56,60][:NI]
    def fin_addr(vd):
        sh=UPC.bit_length()-1
        A(f'v_lshrrev_b32 v{vd}, {sh}, v{vL}'); A(f'v_lshlrev_b32 v{vd}, 12, v{vd}'); A(f'v_and_b32 v9, {UPC-1}, v{vL}'); A(f'v_lshl_add_u32 v{vd}, v9, 4, v{vd}')
        A(f's_mul_i32 s{sT4}, s2, {UPC*16}'); A(f's_lshl_b32 s{sT1}, s{sWAVE}, 17'); A(f's_add_u32 s{sT4}, s{sT4}, s{sT1}')
    def y_loads():
        for k in range(NI):
            A(f's_add_u32 s{sT1}, s{sT4}, {WS_YP+k*PPI*4096}')
            A(f'buffer_load_dwordx4 v[{YR[k]}:{YR[k]+3}], v8, {ws()}, s{sT1} offen {pollflags}')
    def y_issue():
        lab=A.newlabel('Lyi')
        A(f's_cmp_ge_u32 s2, {N2}'); A(f's_cbranch_scc1 {lab}')
        fin_addr(8)
        A(f's_cmp_ge_u32 s{sWAVE}, 7'); A(f's_cbranch_scc1 {lab}')
        y_loads()
        A.label(lab)
    def y_check():
        assert state['i']>=YLOAD+W+1
        lab=A.newlabel('Lyc'); retry=A.newlabel('Lyr'); chk=A.newlabel('Lyk'); ok=A.newlabel('Lyo')
        A('v_mov_b32 v10, 0'); A('v_mov_b32 v11, 0')
        A(f's_cmp_ge_u32 s2, {N2}'); A(f's_cbranch_scc1 {lab}')
        A(f's_cmp_ge_u32 s{sWAVE}, 7'); A(f's_cbranch_scc1 {lab}')
        A(f's_mov_b32 s{sCNT}, 0')
        A.label(chk)
        tagcheck([YR[k]+o for k in range(NI) for o in (1,3)],24,retry)
        A(f's_branch {ok}')
        A.label(retry); timeout(); y_loads(); A('s_waitcnt vmcnt(0)'); A(f's_branch {chk}')
        A.label(ok)
        for k in range(NI):
            A(f'v_add_f32 v10, v10, v{YR[k]}'); A(f'v_add_f32 v11, v11, v{YR[k]+2}')
        A.label(lab)
    hooks[QPOLL]=q_poll_issue
    hooks[YLOAD]=y_issue
    hooks[MLPLOAD]=mlp_load
    hooks[MLPOLL]=ml_poll_issue
    hooks[WOLOAD]=wo_load
    work=[(0,-1,[],w0(c_ln1)),(0,-1,[],w0(c_ln3)),(0,-1,[],w0(c_q)),(0,-1,[],c_tag),(QCHK,-1,[],q_check)]
    kch=[]
    for T in range(8):
        for a in range(2):
            kch.append((0,8*T+4*a+3,[8*T+4*a+e for e in range(4)],(lambda T=T,a=a:k_chunk(T,a))))
    placed=False
    for c in kch:
        if not placed and c[1]>=MLPROC:
            work.append((MLPROC,-1,[],mlp_part)); placed=True
        work.append(c)
    work.append((0,-1,[],maxfin))
    for U in range(8): work.append((0,-1,[],(lambda U=U:v_exp(U))))
    work.append((0,-1,[],transition))
    placed=False
    for U in range(8):
        need=64+8*U+7
        if not placed and need>=MLCHK:
            work.append((MLCHK,-1,[],ml_check)); placed=True
        if U==7: work.append((YLOAD+W+1,-1,[],y_check))
        work.append((0,need,[],(lambda U=U:v_pv(U,0))))
        work.append((0,need,[64+8*U+t for t in range(8)],(lambda U=U:v_pv(U,1))))
    freed=set(); wi=0
    while wi<len(work) or state['i']<NL:
        i=state['i']; issued=False
        if wi<HEADN:
            early,need,fr,fn=work[wi]; fn(); wi+=1
            for _ in range(HEADLOADS): issue_next(window=True,w0skip=(wi<HEADN))
            continue
        if i<NL and (i<RING or (i-RING) in freed):
            issue_next(); issued=True
        landed=state['i']-1-W if state['i']<NL else -2
        n=0
        while wi<len(work) and n<perload:
            early,need,fr,fn=work[wi]
            if issued and state['i']<NL and (early>state['i'] or need>landed): break
            if need>landed and need>=0: A.vmwait(('kv',need))
            fn(); freed.update(fr); wi+=1; n+=1
            if not issued: break
    stamp(4)
    stamp_all(16)
    A.c('tail')
    A(f's_lshl_b32 s{sT0}, s{sWAVE}, 11'); A(f's_add_u32 s{sT0}, s{sT0}, {L_OB}'); A(f'v_add_u32 v26, s{sT0}, v{vV16}')
    A.nop(5)
    A('s_mov_b64 exec, 0xffff')
    for i in range(8): A(f'ds_write_b128 v26, v[{vO+4*i}:{vO+4*i+3}] offset:{i*256}')
    A('s_mov_b64 exec, -1')
    A(f'v_and_b32 v26, 3, v{vL}'); A('v_lshlrev_b32 v26, 9, v26'); A(f'v_lshrrev_b32 v27, 2, v{vL}'); A('v_lshl_add_u32 v26, v27, 4, v26')
    A(f's_lshl_b32 s{sT0}, s{sWAVE}, 2'); A(f's_add_u32 s{sT1}, s{sT0}, {L_OB}'); A(f'v_add_u32 v26, s{sT1}, v26')
    A(f'v_mov_b32 v27, s{sT0}')
    A('s_waitcnt lgkmcnt(0)'); A('s_barrier')
    lab=ifwave('lt',4)
    for w in range(8): A(f'ds_read2st64_b32 v[{64+2*w}:{65+2*w}], v26 offset0:{8*w} offset1:{8*w+1}')
    for w in range(8): A(f'ds_read_b32 v{80+w}, v27 offset:{L_F+16*w}')
    A(f's_lshl_b32 s{sT0}, s2, 12'); A(f's_lshl_b32 s{sT1}, s{sWAVE}, 10'); A(f's_add_u32 s{sT0}, s{sT0}, s{sT1}'); A(f's_add_u32 s{sT0}, s{sT0}, {WS_PART}')
    A(f'v_mov_b32 v29, s{sTAG}'); A(f'v_mov_b32 v31, s{sTAG}')
    A('s_waitcnt lgkmcnt(0)')
    A('v_mul_f32 v28, v64, v80'); A('v_mul_f32 v30, v65, v80'); A('v_mul_f32 v32, v66, v81'); A('v_mul_f32 v33, v67, v81')
    for w in range(2,8,2):
        A(f'v_fmac_f32 v28, v{64+2*w}, v{80+w}'); A(f'v_fmac_f32 v30, v{65+2*w}, v{80+w}')
        A(f'v_fmac_f32 v32, v{66+2*w}, v{81+w}'); A(f'v_fmac_f32 v33, v{67+2*w}, v{81+w}')
    A('v_add_f32 v28, v28, v32'); A('v_add_f32 v30, v30, v33')
    A.vmem(f'buffer_store_dwordx4 v[28:31], v{vV16}, {ws()}, s{sT0} offen {stflags}',certain=False)
    A.label(lab)
    stamp(5)
    lab1=ifwave('eq',4)
    A(f'v_lshrrev_b32 v26, 3, v{vL}'); A('v_lshlrev_b32 v26, 12, v26'); A(f'v_and_b32 v28, 7, v{vL}'); A('v_lshl_add_u32 v26, v28, 4, v26')
    A(f's_lshl_b32 s{sT0}, s{sG}, 17'); A(f's_lshl_b32 s{sT1}, s{sI}, 7'); A(f's_add_u32 s{sT0}, s{sT0}, s{sT1}'); A(f's_add_u32 s{sT0}, s{sT0}, {WS_PART}')
    A(f's_mov_b32 s{sCNT}, 0')
    poll=A.newlabel('Lp1'); A.label(poll); timeout()
    for k in range(4):
        A(f's_add_u32 s{sT1}, s{sT0}, {k*8*4096}')
        A(f'buffer_load_dwordx4 v[{64+4*k}:{67+4*k}], v26, {ws()}, s{sT1} offen {pollflags}')
    A('s_waitcnt vmcnt(0)')
    tagcheck([64+4*k+o for k in range(4) for o in (1,3)],24,poll)
    stamp(6,4)
    A('v_add_f32 v64, v64, v68'); A('v_add_f32 v66, v66, v70'); A('v_add_f32 v72, v72, v76'); A('v_add_f32 v74, v74, v78')
    A('v_add_f32 v64, v64, v72'); A('v_add_f32 v66, v66, v74')
    A.nop(1)
    allred2('add',[64,66],[24,25],("row_ror:8",4,5))
    A('v_cvt_pk_bf16_f32 v24, v64, v66')
    A('v_lshlrev_b32 v64, 16, v24'); A(f'v_and_b32 v65, s{sHI}, v24')
    A(f'v_and_b32 v26, 7, v{vL}'); A('v_lshlrev_b32 v26, 3, v26')
    A(f'ds_write_b64 v26, v[64:65] offset:{L_O16}')
    A('s_waitcnt lgkmcnt(0)')
    A.label(lab1)
    A('s_barrier')
    A('v_mov_b32 v24, 0')
    for k in range(4): A(f'ds_read_b128 v[{64+4*k}:{67+4*k}], v24 offset:{L_O16+16*k}')
    A(f'v_lshlrev_b32 v26, 3, v{vL}')
    A(f's_lshl_b32 s{sT0}, s2, 12'); A(f's_lshl_b32 s{sT1}, s{sWAVE}, 9'); A(f's_add_u32 s{sT0}, s{sT0}, s{sT1}'); A(f's_add_u32 s{sT0}, s{sT0}, {WS_SP}')
    A(f'v_mov_b32 v29, s{sTAG}'); A(f'v_mov_b32 v31, s{sTAG}')
    A('s_waitcnt vmcnt(0) lgkmcnt(0)')
    A(f'v_mul_f32 v28, v64, v{vQP}'); A(f'v_mul_f32 v30, v65, v{vQP+1}')
    for r in range(2,16,2): A(f'v_fmac_f32 v28, v{64+r}, v{vQP+r}'); A(f'v_fmac_f32 v30, v{65+r}, v{vQP+r+1}')
    A('v_add_f32 v28, v28, v30')
    A.nop(2); A(f'v_mov_b32_dpp v30, v28 {dpp(XOR1)}')
    A('s_mov_b32 exec_lo, 0x55555555'); A('s_mov_b32 exec_hi, 0x55555555')
    A.vmem(f'buffer_store_dwordx4 v[28:31], v26, {ws()}, s{sT0} offen {stflags}',certain=False)
    A('s_mov_b64 exec, -1')
    stamp(7)
    A(f's_cmp_ge_u32 s2, {N2}'); A('s_cbranch_scc1 L_end')
    A(f's_mov_b32 s{sCNT}, 0')
    poll=A.newlabel('Lp2'); A.label(poll); timeout()
    for k in range(NI):
        A(f's_add_u32 s{sT1}, s{sT4}, {WS_SP+k*PPI*4096}')
        A(f'buffer_load_dwordx4 v[{64+4*k}:{67+4*k}], v8, {ws()}, s{sT1} offen {pollflags}')
    A('s_waitcnt vmcnt(0)')
    tagcheck([64+4*k+o for k in range(NI) for o in (1,3)],24,poll)
    stamp(8)
    for k in range(1,NI):
        A(f'v_add_f32 v64, v64, v{64+4*k}'); A(f'v_add_f32 v66, v66, v{66+4*k}')
    A.nop(1)
    bits=[]
    if UPC==4: bits.append("row_ror:4")
    bits+=["row_ror:8",4,5]
    A('v_mov_b32 v8, v64'); A('v_mov_b32 v9, v66')
    A.nop(2)
    allred2('add',[8,9,10,11],[24,25,26,28],bits)
    A(f'v_and_b32 v26, {UPC-1}, v{vL}'); A('v_lshlrev_b32 v26, 4, v26')
    A(f's_mul_i32 s{sT0}, s{sWAVE}, {UPC*16}'); A(f'v_add_u32 v28, s{sT0}, v26')
    A(f'ds_write_b128 v28, v[8:11] offset:{L_FIN}')
    A(f'v_lshrrev_b32 v29, 2, v26'); A(f's_mul_i32 s{sT0}, s2, {UPC*4}')
    A(f'buffer_load_dword v{vEP}, v29, s[{sX}:{sX+3}], s{sT0} offen')
    A('s_waitcnt lgkmcnt(0)'); A('s_barrier')
    A(f's_cmp_lg_u32 s{sWAVE}, 0'); A('s_cbranch_scc1 L_end')
    for w in range(8): A(f'ds_read_b128 v[{64+4*w}:{67+4*w}], v26 offset:{L_FIN+w*UPC*16}')
    A('s_waitcnt lgkmcnt(0)')
    for o in range(4):
        A(f'v_add_f32 v{64+o}, v{64+o}, v{68+o}'); A(f'v_add_f32 v{72+o}, v{72+o}, v{76+o}'); A(f'v_add_f32 v{80+o}, v{80+o}, v{84+o}'); A(f'v_add_f32 v{88+o}, v{88+o}, v{92+o}')
    for o in range(4):
        A(f'v_add_f32 v{64+o}, v{64+o}, v{72+o}'); A(f'v_add_f32 v{80+o}, v{80+o}, v{88+o}')
    for o in range(4): A(f'v_add_f32 v{64+o}, v{64+o}, v{80+o}')
    A('v_cvt_pk_bf16_f32 v32, v64, v65'); A('v_cvt_pk_bf16_f32 v33, v66, v67')
    A('v_lshlrev_b32 v64, 16, v32'); A(f'v_and_b32 v65, s{sHI}, v32'); A('v_lshlrev_b32 v66, 16, v33'); A(f'v_and_b32 v67, s{sHI}, v33')
    A('v_mul_f32 v28, 0xbfb8aa3b, v66'); A('v_mul_f32 v29, 0xbfb8aa3b, v67'); A('v_exp_f32 v28, v28'); A('v_exp_f32 v29, v29'); A.nop(1)
    A('v_add_f32 v28, 1.0, v28'); A('v_add_f32 v29, 1.0, v29'); A('v_rcp_f32 v28, v28'); A('v_rcp_f32 v29, v29'); A.nop(1)
    A('v_mul_f32 v28, v66, v28'); A('v_mul_f32 v29, v67, v29')
    A('v_cvt_pk_bf16_f32 v32, v28, v29'); A('v_lshlrev_b32 v28, 16, v32'); A(f'v_and_b32 v29, s{sHI}, v32')
    A('v_mul_f32 v28, v64, v28'); A('v_mul_f32 v29, v65, v29')
    A('v_cvt_pk_bf16_f32 v32, v28, v29'); A('v_lshlrev_b32 v28, 16, v32'); A(f'v_and_b32 v29, s{sHI}, v32')
    A('s_waitcnt vmcnt(0)')
    A(f'v_lshlrev_b32 v30, 16, v{vEP}'); A(f'v_and_b32 v31, s{sHI}, v{vEP}')
    A('v_add_f32 v28, v30, v28'); A('v_add_f32 v29, v31, v29')
    A('v_cvt_pk_bf16_f32 v32, v28, v29')
    A(f'v_lshrrev_b32 v29, 2, v26'); A(f's_mul_i32 s{sT0}, s2, {UPC*4}')
    A(f's_mov_b64 exec, {(1<<UPC)-1}')
    A(f'buffer_store_dword v32, v29, s[{sOUT}:{sOUT+3}], s{sT0} offen')
    lab=A.newlabel('Lep')
    A('s_cmp_lg_u32 s2, 0'); A(f's_cbranch_scc1 {lab}')
    A('s_mov_b64 exec, 1')
    A(f'v_mov_b32 v37, s{sTAG}')
    A(f'buffer_store_dword v37, off, {ws()}, 0 sc1')
    A.label(lab)
    A('s_mov_b64 exec, -1')
    stamp(9)
    A.label('L_end')
    A('s_endpgm')
    out=HDR+f'; @launch grid=(256,1,1) block=(512,1,1) lds={LDS_BYTES}\n'
    out+='.amdgcn_target "amdgcn-amd-amdhsa--gfx950"\n.text\n'+f'.globl {NAME}\n.p2align 8\n.type {NAME},@function\n{NAME}:\n'
    out+=A.text()
    out+=f'''.section .rodata,"a"
.p2align 6
.amdhsa_kernel {NAME}
  .amdhsa_next_free_vgpr 256
  .amdhsa_next_free_sgpr 102
  .amdhsa_accum_offset 256
  .amdhsa_group_segment_fixed_size 0
  .amdhsa_kernarg_size 96
  .amdhsa_user_sgpr_count 2
  .amdhsa_user_sgpr_kernarg_segment_ptr 1
  .amdhsa_system_sgpr_workgroup_id_x 1
.end_amdhsa_kernel
'''
    return out

if __name__=='__main__':
    out=sys.argv[1]
    kw=json.loads(sys.argv[2]) if len(sys.argv)>2 else {}
    open(out,'w').write(gen(**kw))
```

```python
import sys, json
sys.path.insert(0,'gen')
from asmlib import *

NAME='recurrent_scan__gqa_block_cached__glu_gated_geglu__decode_kernel'
REF=open('recurrent_scan__gqa_block_cached__glu_gated_geglu__decode.s.ref').read()
HDR=REF[:REF.index('; Override launch')]

WS_Q=0x1000; WS_ML=0x8000; WS_PART=0x10000; WS_SP=0x200000; WS_YP=0x300000; WS_STAMP=0x400000
WS_SIZE=0x1000000
L_XN=0; L_QP=8192; L_GU=11264; L_ML=9216; L_O16=9472; L_F=9600; L_FIN=9728; L_OB=16384; LDS_BYTES=32768
sK,sV,sWQ,sWO,sWG,sWU,sWD,sX,sOUT,sWS=28,32,36,40,44,48,52,56,60,64
sWAVE,sG,sI,sTAG,sKV,sT0,sPLO,sPHI,sSCALE,sLOG2E,sHI,sB=68,69,70,71,72,73,74,75,76,77,78,79
sH=80
sT1,sT2=88,89
sM=90
sCB=92; sQS=93
sCNT=94; sVALID=95
sST=96
sT3,sT4=98,99
vTID,vL,vKOFF,vV16,vMAX,vSUM,vMLOG,vM2=0,1,2,3,4,5,6,7
vX=8
vEP=12; vA=13; vB=14; vC=15
vQP=40
vQF=56
vS=64
vO=96
vR=128
RING=32
TMO=0x8000

def dpp(ctrl, bank=0xf, row=0xf): return f'{ctrl} row_mask:0x{row:x} bank_mask:0x{bank:x}'
XOR1='quad_perm:[1,0,3,2]'; XOR2='quad_perm:[2,3,0,1]'; HM='row_half_mirror'; RM='row_mirror'

def gen(W=4, BURST=4, QPOLL=18, QCHK=23, MLPLOAD=34, MLPROC=44, MLPOLL=90, MLCHK=100, WOLOAD=120, YLOAD=114, N2=32,
        diag=False, kflags='nt', wflags='nt', woflags='nt', pollflags='sc1', stflags='sc1', perload=1, HEADLOADS=1, HEADN=4, nomlp=False, nowo=False, nocomp=False, nohead=False, startbar=True, rot=0, WODD=0, oddmod=1, oddfrom=0, WE=None, WO=None, PAR=0, guflags='', XL=127, XMODE=0, BARS=()):
    if WE: W=min(WE+WO); WODD=max(WE+WO)
    A=Asm()
    def stamp(k, wave=0):
        if not diag: return
        lab=A.newlabel('Lst')
        A(f's_cmp_lg_u32 s{sWAVE}, {wave}'); A(f's_cbranch_scc1 {lab}')
        A(f's_memrealtime s[{sST}:{sST+1}]'); A('s_waitcnt lgkmcnt(0)')
        A(f'v_mov_b32 v14, s{sST}'); A(f'v_mov_b32 v15, s{sST+1}')
        A(f's_lshl_b32 s{sT3}, s2, 8'); A(f's_add_u32 s{sT3}, s{sT3}, {WS_STAMP+8*k}')
        A(f's_mov_b64 s[100:101], exec'); A(f's_mov_b64 exec, 1')
        A(f'buffer_store_dwordx2 v[14:15], off, s[{sWS}:{sWS+3}], s{sT3}')
        A(f's_mov_b64 exec, s[100:101]')
        A.label(lab)
    def stamp_all(k):
        if not diag: return
        A(f's_memrealtime s[{sST}:{sST+1}]'); A('s_waitcnt lgkmcnt(0)')
        A(f'v_mov_b32 v14, s{sST}'); A(f'v_mov_b32 v15, s{sST+1}')
        A(f's_lshl_b32 s{sT3}, s2, 8'); A(f's_add_u32 s{sT3}, s{sT3}, {WS_STAMP+8*k}')
        A(f's_lshl_b32 s{sST}, s{sWAVE}, 3'); A(f's_add_u32 s{sT3}, s{sT3}, s{sST}')
        A(f's_mov_b64 s[100:101], exec'); A(f's_mov_b64 exec, 1')
        A(f'buffer_store_dwordx2 v[14:15], off, s[{sWS}:{sWS+3}], s{sT3}')
        A(f's_mov_b64 exec, s[100:101]')
    def allred(op, v, t, bits=(0,1,2,3,4,5)):
        ins={'add':'v_add_f32','max':'v_max_f32'}[op]
        m={0:XOR1,1:XOR2,2:HM,3:RM}
        for b in bits:
            if b<4:
                A.nop(2)
                A(f'{ins}_dpp v{v}, v{v}, v{v} {dpp(m[b])}')
            else:
                A(f'v_mov_b32 v{t}, v{v}')
                A.nop(2)
                A(f'v_permlane{16 if b==4 else 32}_swap_b32 v{v}, v{t}')
                A(f'{ins} v{v}, v{v}, v{t}')
    def allred2(op, vs, ts, bits):
        ins={'add':'v_add_f32','max':'v_max_f32'}[op]
        m={0:XOR1,1:XOR2,2:HM,3:RM}
        n=len(vs)
        for b in bits:
            if isinstance(b,str) or b<4:
                ctrl=b if isinstance(b,str) else m[b]
                A.nop(max(0,3-n) if n>1 else 2)
                if n>=3: pass
                for v in vs: A(f'{ins}_dpp v{v}, v{v}, v{v} {dpp(ctrl)}')
            else:
                for v,t in zip(vs,ts): A(f'v_mov_b32 v{t}, v{v}')
                A.nop(2 if n==1 else (1 if n==2 else 0)+0)
                if n==2: A.nop(1)
                for v,t in zip(vs,ts): A(f'v_permlane{16 if b==4 else 32}_swap_b32 v{v}, v{t}')
                for v,t in zip(vs,ts): A(f'{ins} v{v}, v{v}, v{t}')
    def treduce(vals, bits):
        vals=list(vals)
        for b in bits:
            n=len(vals)//2
            lo,hi=vals[:n],vals[n:]
            if b in (3,2):
                ctrl=RM if b==3 else HM
                m0,m1=(0x3,0xC) if b==3 else (0x5,0xA)
                A.nop(2)
                for k in range(n):
                    A(f'v_add_f32_dpp v{lo[k]}, v{lo[k]}, v{lo[k]} {dpp(ctrl,bank=m0)}')
                for k in range(n):
                    A(f'v_add_f32_dpp v{lo[k]}, v{hi[k]}, v{hi[k]} {dpp(ctrl,bank=m1)}')
            else:
                ctrl=XOR2 if b==1 else XOR1
                mask=0xCCCCCCCC if b==1 else 0xAAAAAAAA
                A(f's_mov_b32 s{sM}, 0x{mask:x}'); A(f's_mov_b32 s{sM+1}, 0x{mask:x}')
                for k in range(n):
                    A(f'v_add_f32_dpp v{lo[k]}, v{lo[k]}, v{lo[k]} {dpp(ctrl)}')
                    A(f'v_add_f32_dpp v{hi[k]}, v{hi[k]}, v{hi[k]} {dpp(ctrl)}')
                for k in range(n):
                    A(f'v_cndmask_b32 v{lo[k]}, v{lo[k]}, v{hi[k]}, s[{sM}:{sM+1}]')
            vals=lo
        return vals[0]
    def rne(dst, src):
        A(f'v_cvt_pk_bf16_f32 v{dst}, v{src}, v{src}')
        A(f'v_and_b32 v{dst}, s{sHI}, v{dst}')
    def tagcheck(regs, t, retry):
        A(f'v_xor_b32 v{t}, s{sTAG}, v{regs[0]}')
        for r in regs[1:]:
            A(f'v_xor_b32 v{t+1}, s{sTAG}, v{r}')
            A(f'v_or_b32 v{t}, v{t}, v{t+1}')
        A(f'v_cmp_ne_u32 vcc, 0, v{t}')
        A('s_cmp_lg_u64 vcc, 0')
        A(f's_cbranch_scc1 {retry}')
    def ws(n=4): return f's[{sWS}:{sWS+3}]'
    def timeout():
        A(f's_add_u32 s{sCNT}, s{sCNT}, 1'); A(f's_cmp_gt_u32 s{sCNT}, {TMO}'); A('s_cbranch_scc1 L_end')
    def ifwave(cond, k):
        lab=A.newlabel('Lw')
        inv={'eq':'lg','lt':'ge','ge':'lt'}[cond]
        A(f's_cmp_{inv}_u32 s{sWAVE}, {k}'); A(f's_cbranch_scc1 {lab}')
        return lab

    A('s_cmp_ge_u32 s2, 256'); A('s_cbranch_scc1 L_end')
    A('s_load_dwordx16 s[4:19], s[0:1], 0'); A('s_load_dwordx8 s[20:27], s[0:1], 64')
    if diag: A(f's_memrealtime s[{sST}:{sST+1}]')
    A(f'v_and_b32 v{vL}, 63, v0'); A(f'v_lshrrev_b32 v7, 6, v0'); A.nop(1); A(f'v_readfirstlane_b32 s{sWAVE}, v7')
    A(f's_lshr_b32 s{sG}, s2, 5'); A(f's_and_b32 s{sI}, s2, 31')
    A(f's_mov_b32 s{sPLO}, 0x05040100'); A(f's_mov_b32 s{sPHI}, 0x07060302')
    A(f's_mov_b32 s{sSCALE}, 0x3db504f3'); A(f's_mov_b32 s{sLOG2E}, 0x3fb8aa3b'); A(f's_mov_b32 s{sHI}, 0xffff0000')
    A(f'v_lshlrev_b32 v{vV16}, 4, v{vL}')
    A(f'v_and_b32 v{vKOFF}, 3, v{vL}'); A(f'v_lshlrev_b32 v{vKOFF}, 10, v{vKOFF}')
    A(f'v_bfe_u32 v7, v{vL}, 2, 1'); A(f'v_lshl_add_u32 v{vKOFF}, v7, 8, v{vKOFF}')
    A(f'v_lshrrev_b32 v7, 3, v{vL}'); A(f'v_lshl_add_u32 v{vKOFF}, v7, 4, v{vKOFF}')
    A(f'v_and_b32 v{vB}, 31, v{vL}'); A(f'v_lshlrev_b32 v{vB}, 14, v{vB}'); A(f'v_lshrrev_b32 v7, 5, v{vL}'); A(f'v_lshl_add_u32 v{vB}, v7, 4, v{vB}')
    A(f'v_lshlrev_b32 v{vA}, 2, v{vL}')
    A('v_mov_b32 v8, 0')
    A(f's_lshl_b32 s{sKV}, s{sG}, 24'); A(f's_lshl_b32 s{sT0}, s{sI}, 3'); A(f's_add_u32 s{sT0}, s{sT0}, s{sWAVE}')
    if rot==0:
        A(f's_lshl_b32 s{sT0}, s{sT0}, 13'); A(f's_add_u32 s{sKV}, s{sKV}, s{sT0}')
    else:
        A(f's_mov_b32 s3, s{sT0}')
    A(f's_lshr_b32 s{sT0}, s2, 1'); A(f's_and_b32 s{sT0}, s{sT0}, 3'); A(f's_mul_i32 s{sT0}, s{sT0}, 7')
    A(f's_lshr_b32 s{sT1}, s2, 5'); A(f's_add_u32 s{sT0}, s{sT0}, s{sT1}'); A(f's_lshl_b32 s{sT0}, s{sT0}, 2')
    A(f's_lshr_b32 s{sT1}, s2, 3'); A(f's_and_b32 s{sB}, s{sT1}, 3'); A(f's_add_u32 s{sB}, s{sB}, s{sT0}')
    A(f's_cmp_lt_u32 s{sT1}, 28'); A(f's_cselect_b32 s{sVALID}, 1, 0'); A(f's_cselect_b32 s{sB}, s{sB}, 0')
    A(f's_and_b32 s{sT0}, s{sI}, 7'); A(f's_lshl_b32 s{sT0}, s{sT0}, 2'); A(f's_lshr_b32 s{sT1}, s{sI}, 3'); A(f's_add_u32 s{sCB}, s{sT0}, s{sT1}')
    A(f's_lshl_b32 s{sT0}, s{sCB}, 5'); A(f's_lshl_b32 s{sT1}, s{sG}, 10'); A(f's_add_u32 s{sT0}, s{sT0}, s{sT1}')
    A(f's_lshl_b32 s{sQS}, s{sG}, 11'); A(f's_add_u32 s{sQS}, s{sQS}, {WS_Q}')
    A('s_waitcnt lgkmcnt(0)')
    if diag: A(f's_memrealtime s[14:15]')
    def mksrd(d,p,sz):
        A(f's_mov_b32 s{d}, s{p}'); A(f's_mov_b32 s{d+1}, s{p+1}'); A(f's_mov_b32 s{d+2}, 0x{sz:x}'); A(f's_mov_b32 s{d+3}, 0x00020000')
    mksrd(sX,4,1024); mksrd(sWQ,10,4<<20); mksrd(sWS,26,WS_SIZE)
    A(f's_load_dword s{sTAG}, s[26:27], 0')
    labh=ifwave('eq',0)
    A(f'buffer_load_dwordx4 v[{vX}:{vX+3}], v{vV16}, s[{sX}:{sX+3}], 0 offen')
    if not nohead:
        for k in range(8):
            A(f's_add_u32 s{sT1}, s{sT0}, {k*64*8192}')
            A(f'buffer_load_dwordx4 v[{64+8*k}:{67+8*k}], v{vB}, s[{sWQ}:{sWQ+3}], s{sT1} offen {wflags}')
            A(f's_add_u32 s{sT1}, s{sT0}, {k*64*8192+8192}')
            A(f'buffer_load_dwordx4 v[{68+8*k}:{71+8*k}], v{vB}, s[{sWQ}:{sWQ+3}], s{sT1} offen {wflags}')
    A.label(labh)
    mksrd(sK,6,128<<20)
    if startbar: A('s_barrier')

    NL=128
    state={'i':0}
    freed=set()
    hooks={}
    def kv_load(idx):
        isK=idx<64; t=(idx%64)//8; e=idx%8
        slot=idx%RING; r=vR+4*slot
        if e%4==0:
            if rot==0:
                off=t*(256*8192)+(e//4)*4096
                A(f's_add_u32 s{sT2}, s{sKV}, 0x{off:x}')
            else:
                A(f's_add_u32 s{sT2}, s3, {(rot*8*t)%256}'); A(f's_and_b32 s{sT2}, s{sT2}, 255'); A(f's_lshl_b32 s{sT2}, s{sT2}, 13')
                A(f's_add_u32 s{sT2}, s{sT2}, s{sKV}'); A(f's_add_u32 s{sT2}, s{sT2}, 0x{t*(256*8192)+(e//4)*4096:x}')
        if isK:
            q=e%4; imm=(q//2)*512+(q%2)*128
            A.vmem(f'buffer_load_dwordx4 v[{r}:{r+3}], v{vKOFF}, s[{sK}:{sK+3}], s{sT2} offen offset:{imm} {kflags}',('kv',idx))
        else:
            imm=(e%4)*1024
            A.vmem(f'buffer_load_dwordx4 v[{r}:{r+3}], v{vV16}, s[{sV}:{sV+3}], s{sT2} offen offset:{imm} {kflags}',('kv',idx))
    xl={'done':False}
    def kvwait(tag):
        if not xl['done']:
            A.vmwait(tag); return
        idx=max(i for i,t in enumerate(A.vm) if t==tag); n=len(A.vm)-1-idx
        l1=A.newlabel('Lx3'); l2=A.newlabel('Lx3'); ld=A.newlabel('Lx3')
        A(f's_bitcmp1_b32 s2, 0'); A(f's_cbranch_scc{1 if PAR==0 else 0} {l1}')
        A(f's_cmp_ge_u32 s{sWAVE}, 4'); A(f's_cbranch_scc1 {l2}')
        A(f's_waitcnt vmcnt({min(63,n+36)})'); A(f's_branch {ld}')
        A.label(l2); A(f's_waitcnt vmcnt({n+20})'); A(f's_branch {ld}')
        A.label(l1); A(f's_waitcnt vmcnt({n})')
        A.label(ld)
    def issue_next(window=True, w0skip=False):
        i=state['i']
        if window and i>=W:
            if w0skip:
                lab=A.newlabel('Lsk')
                A(f's_cmp_eq_u32 s{sWAVE}, 0'); A(f's_cbranch_scc1 {lab}')
                A.vmwait(('kv',i-W))
                A.label(lab)
            elif WE and i>=WODD:
                we=WE[i%len(WE)]; wo=WO[i%len(WO)]
                if we==wo: A.vmwait(('kv',i-we))
                else:
                    lab=A.newlabel('Lod')
                    A.vmwait(('kv',i-max(we,wo)))
                    if wo>we: A(f's_bitcmp1_b32 s13, 0')
                    else: A(f's_bitcmp0_b32 s13, 0')
                    A(f's_cbranch_scc1 {lab}')
                    A.vmwait(('kv',i-min(we,wo)))
                    A.label(lab)
            elif WODD and not WE and i>=WODD and i>=oddfrom and (i%oddmod==0):
                lab=A.newlabel('Lod')
                A.vmwait(('kv',i-WODD))
                A(f's_bitcmp1_b32 s13, 0'); A(f's_cbranch_scc1 {lab}')
                A.vmwait(('kv',i-W))
                A.label(lab)
            else:
                A.vmwait(('kv',i-W))
        kv_load(i)
        state['i']=i+1
        if i+1 in BARS: A('s_barrier')
        if i+1 in hooks: hooks[i+1]()
    for _ in range(BURST): issue_next(window=False)
    mksrd(sV,8,128<<20); mksrd(sWO,12,4<<20); mksrd(sWG,16,512*1792*2); mksrd(sWU,18,512*1792*2); mksrd(sWD,20,512*1792*2); mksrd(sOUT,22,1024)
    A('s_getreg_b32 s13, hwreg(HW_REG_XCC_ID)')
    if diag:
        lab=ifwave('eq',0)
        A(f'v_mov_b32 v14, s{sST}'); A(f'v_mov_b32 v15, s{sST+1}')
        A(f's_lshl_b32 s{sT3}, s2, 8'); A(f's_add_u32 s{sT3}, s{sT3}, {WS_STAMP}')
        A(f's_mov_b64 exec, 1'); A(f'buffer_store_dwordx2 v[14:15], off, {ws()}, s{sT3}')
        A('s_waitcnt lgkmcnt(0)'); A('v_mov_b32 v16, s14'); A('v_mov_b32 v17, s15'); A(f'buffer_store_dwordx2 v[16:17], off, {ws()}, s{sT3} offset:112')
        A(f's_mov_b64 exec, -1')
        A.label(lab)

    A('s_waitcnt lgkmcnt(0)'); A(f's_add_u32 s{sTAG}, s{sTAG}, 0x9e3779b9')
    def w0(fn):
        def f():
            if nohead: return
            lab=ifwave('eq',0); fn(); A.label(lab)
        return f
    def nafter():
        return len(A.vm)
    def c_ln1():
        A.c('layernorm 1')
        A(f's_waitcnt vmcnt({16+nafter()})'); stamp(10)
        for k in range(4):
            A(f'v_lshlrev_b32 v{16+2*k}, 16, v{vX+k}'); A(f'v_and_b32 v{17+2*k}, s{sHI}, v{vX+k}')
        A('v_readfirstlane_b32 s14, v16')
        A.nop(2)
        for k in range(8): A(f'v_subrev_f32 v{28+k}, s14, v{16+k}')
        A('v_add_f32 v24, v28, v29'); A('v_mul_f32 v25, v28, v28'); A('v_add_f32 v26, v30, v31'); A('v_mul_f32 v27, v29, v29')
        A('v_add_f32 v24, v24, v32'); A('v_fmac_f32 v25, v30, v30'); A('v_add_f32 v26, v26, v33'); A('v_fmac_f32 v27, v31, v31')
        A('v_add_f32 v24, v24, v34'); A('v_fmac_f32 v25, v32, v32'); A('v_add_f32 v26, v26, v35'); A('v_fmac_f32 v27, v33, v33')
        A('v_fmac_f32 v25, v34, v34'); A('v_add_f32 v24, v24, v26'); A('v_fmac_f32 v27, v35, v35')
        A('v_add_f32 v25, v25, v27')
        A.nop(1)
        allred2('add',[24,25],[26,27],(0,1,2,3,4,5))
        A('v_mul_f32 v24, 0x3b000000, v24'); A('v_mul_f32 v25, 0x3b000000, v25')
        A('v_fma_f32 v25, -v24, v24, v25'); A('v_max_f32 v25, 0, v25')
        A('v_add_f32 v24, s14, v24')
    def c_ln3():
        A('v_cvt_pk_bf16_f32 v26, v24, v25')
        A('v_lshlrev_b32 v24, 16, v26'); A(f'v_and_b32 v25, s{sHI}, v26')
        A('v_add_f32 v25, 0x3727c5ac, v25'); rne(25,25)
        A('v_sqrt_f32 v25, v25')
        for k in range(4):
            A(f'v_sub_f32 v{28+2*k}, v{16+2*k}, v24'); A(f'v_sub_f32 v{29+2*k}, v{17+2*k}, v24')
        rne(25,25)
        A('v_rcp_f32 v26, v25')
        for k in range(4):
            A(f'v_cvt_pk_bf16_f32 v{36+k}, v{28+2*k}, v{29+2*k}')
        for k in range(4):
            A(f'v_lshlrev_b32 v{28+2*k}, 16, v{36+k}'); A(f'v_and_b32 v{29+2*k}, s{sHI}, v{36+k}')
        for k in range(8): A(f'v_mul_f32 v{16+k}, v{28+k}, v26')
        for k in range(8): A(f'v_fma_f32 v{28+k}, -v{16+k}, v25, v{28+k}')
        for k in range(8): A(f'v_fma_f32 v{16+k}, v{28+k}, v26, v{16+k}')
        for k in range(4): A(f'v_cvt_pk_bf16_f32 v{vX+k}, v{16+2*k}, v{17+2*k}')
        A(f'ds_write_b128 v{vV16}, v[{vX}:{vX+3}] offset:{L_XN}')
        A(f'v_and_b32 v17, 31, v{vL}'); A(f'v_lshlrev_b32 v17, 2, v17')
        for k in range(4): A(f'ds_read2_b32 v[{16+2*k+2}:{17+2*k+2}], v17 offset0:{64*k} offset1:{64*k+32}') if False else None
        for k in range(4): A(f'ds_read2_b32 v[{40+2*k}:{41+2*k}], v17 offset0:{64*k} offset1:{64*k+32}')
    def c_q():
        A.c('q gemv'); stamp(13)
        A(f's_waitcnt vmcnt({nafter()})'); stamp(12)
        A('s_waitcnt lgkmcnt(0)')
        for k in range(8):
            for j in range(4):
                A(f'v_perm_b32 v{16+2*j}, v{68+8*k+j}, v{64+8*k+j}, s{sPLO}'); A(f'v_perm_b32 v{17+2*j}, v{68+8*k+j}, v{64+8*k+j}, s{sPHI}')
            for c in range(8):
                if k==0: A(f'v_dot2_f32_bf16 v{32+c}, v{16+c}, v40, 0')
                else: A(f'v_dot2c_f32_bf16 v{32+c}, v{16+c}, v{40+k}')
        A.nop(1)
        r=treduce([32+k for k in range(8)],(3,2,1))
        allred('add',r,24,bits=(0,4))
        A.nop(2); A(f'v_mov_b32_dpp v25, v{r} {dpp(XOR2)}')
        A(f'v_cvt_pk_bf16_f32 v24, v{r}, v25')
        A.nop(2); A(f'v_mov_b32_dpp v26, v24 {dpp("row_shl:4")}')
        A(f'v_mov_b32 v25, s{sTAG}'); A(f'v_mov_b32 v27, s{sTAG}')
        A(f'v_lshrrev_b32 v28, 5, v{vL}'); A(f'v_lshlrev_b32 v28, 5, v28'); A(f'v_bfe_u32 v29, v{vL}, 3, 1'); A(f'v_lshl_add_u32 v28, v29, 4, v28')
        A(f's_lshl_b32 s{sT0}, s{sCB}, 6'); A(f's_add_u32 s{sT0}, s{sT0}, s{sQS}')
        A('s_mov_b32 exec_lo, 0x101'); A('s_mov_b32 exec_hi, 0x101')
        A(f'buffer_store_dwordx4 v[24:27], v28, {ws()}, s{sT0} offen {stflags}')
        A('s_mov_b64 exec, -1')
        stamp(1)
    def c_tag():
        A(f'v_and_b32 v21, 3, v{vL}'); A(f'v_lshlrev_b32 v21, 9, v21'); A(f'v_lshrrev_b32 v22, 4, v{vL}'); A(f'v_lshl_add_u32 v21, v22, 6, v21')
        A(f'v_bfe_u32 v22, v{vL}, 2, 1'); A(f'v_lshl_add_u32 v{vEP}, v22, 5, v21')
        A(f'v_mov_b32 v{vMAX}, 0xff800000'); A(f'v_mov_b32 v{vSUM}, 0')
    def q_poll_issue(track=True):
        if nohead: return
        for k in range(4):
            s=f'buffer_load_dwordx4 v[{vQP+4*k}:{vQP+4*k+3}], v{vEP}, {ws()}, s{sQS} offen offset:{(k//2)*256+(k%2)*16} {pollflags}'
            if track: A.vmem(s,('qp',k))
            else: A(s)
    def q_check():
        if nohead: return
        retry=A.newlabel('Lqr'); ok=A.newlabel('Lqok'); chk=A.newlabel('Lqc')
        A.vmwait(('qp',3))
        A(f's_mov_b32 s{sCNT}, 0')
        A.label(chk)
        tagcheck([vQP+4*k+o for k in range(4) for o in (1,3)],24,retry)
        A(f's_branch {ok}')
        A.label(retry); timeout(); q_poll_issue(False); A('s_waitcnt vmcnt(0)'); A(f's_branch {chk}')
        A.label(ok)
        for k in range(4):
            A(f'v_mov_b32 v{vQF+2*k}, v{vQP+4*k}'); A(f'v_mov_b32 v{vQF+2*k+1}, v{vQP+4*k+2}')
        A.nop(2)
        stamp(2)
    GU=[160,164,168,172]
    def extra_loads():
        lab=A.newlabel('Lxl')
        A(f's_bitcmp{1-PAR if False else (0 if PAR==0 else 1)}_b32 s2, 0') if False else None
        A(f's_bitcmp1_b32 s2, 0'); A(f's_cbranch_scc{1 if PAR==0 else 0} {lab}')
        for idx in list(range(96,112)):
            assert idx in freed, idx
        A(f'v_and_b32 v{vC}, 31, v{vL}'); A(f'v_mul_u32_u24 v{vC}, 3584, v{vC}'); A(f'v_lshrrev_b32 v9, 5, v{vL}'); A(f'v_lshl_add_u32 v{vC}, v9, 4, v{vC}')
        A(f's_mul_i32 s{sT0}, s{sWAVE}, {64*3584}'); A(f's_lshl_b32 s{sT1}, s{sB}, 5'); A(f's_add_u32 s{sT0}, s{sT0}, s{sT1}'); A(f's_add_u32 s{sT1}, s{sT0}, {32*3584}')
        A(f'buffer_load_dwordx4 v[{GU[0]}:{GU[0]+3}], v{vC}, s[{sWG}:{sWG+3}], s{sT0} offen {guflags}')
        A(f'buffer_load_dwordx4 v[{GU[2]}:{GU[2]+3}], v{vC}, s[{sWU}:{sWU+3}], s{sT0} offen {guflags}')
        A(f'buffer_load_dwordx4 v[{GU[1]}:{GU[1]+3}], v{vC}, s[{sWG}:{sWG+3}], s{sT1} offen {guflags}')
        A(f'buffer_load_dwordx4 v[{GU[3]}:{GU[3]+3}], v{vC}, s[{sWU}:{sWU+3}], s{sT1} offen {guflags}')
        labw=A.newlabel('Lxw');
        A(f's_cmp_ge_u32 s{sWAVE}, 4'); A(f's_cbranch_scc1 {labw}')
        A(f's_lshl_b32 s{sT0}, s{sG}, 19'); A(f's_lshr_b32 s{sT1}, s{sI}, 1'); A(f's_lshl_b32 s{sT1}, s{sT1}, 15'); A(f's_add_u32 s{sT0}, s{sT0}, s{sT1}')
        A(f's_lshl_b32 s{sT1}, s{sWAVE}, 8'); A(f's_add_u32 s{sT0}, s{sT0}, s{sT1}')
        for r in range(32):
            if r%4==0 and r>0: A(f's_add_u32 s{sT0}, s{sT0}, 4096')
            A(f'buffer_load_dword v{128+r}, v{vA}, s[{sWO}:{sWO+3}], s{sT0} offen offset:{(r%4)*1024} {woflags}')
        A(f's_branch {lab}')
        A.label(labw)
        A(f's_lshl_b32 s{sT0}, s{sB}, 14'); A(f's_sub_u32 s{sT1}, s{sWAVE}, 4'); A(f's_lshl_b32 s{sT1}, s{sT1}, 8'); A(f's_add_u32 s{sT0}, s{sT0}, s{sT1}')
        for r in range(16):
            if r%4==0 and r>0: A(f's_add_u32 s{sT0}, s{sT0}, 4096')
            A(f'buffer_load_dword v{128+r}, v{vA}, s[{sWD}:{sWD+3}], s{sT0} offen offset:{(r%4)*1024} {woflags}')
        A.label(lab)
        xl['done']=True
    def k_chunk(T,a):
        if nocomp: return
        base=8*T+4*a
        R=[vR+4*((base+e)%RING) for e in range(4)]
        DA,DB=16,20
        A(f'v_mfma_f32_16x16x32_bf16 v[{DA}:{DA+3}], v[{R[0]}:{R[0]+3}], v[{vQF}:{vQF+3}], 0')
        A(f'v_mfma_f32_16x16x32_bf16 v[{DB}:{DB+3}], v[{R[2]}:{R[2]+3}], v[{vQF}:{vQF+3}], 0')
        A(f'v_mfma_f32_16x16x32_bf16 v[{DA}:{DA+3}], v[{R[1]}:{R[1]+3}], v[{vQF+4}:{vQF+7}], v[{DA}:{DA+3}]')
        A(f'v_mfma_f32_16x16x32_bf16 v[{DB}:{DB+3}], v[{R[3]}:{R[3]+3}], v[{vQF+4}:{vQF+7}], v[{DB}:{DB+3}]')
        A.nop(8)
        for r in range(4): A(f'v_permlane32_swap_b32 v{DA+r}, v{DB+r}')
        for r in range(4): A(f'v_add_f32_dpp v{24+r}, v{DB+r}, v{DA+r} row_shl:4 row_mask:0xf bank_mask:0xf bound_ctrl:0')
        A(f'v_max3_f32 v{vMAX}, v24, v25, v{vMAX}'); A(f'v_max3_f32 v{vMAX}, v26, v27, v{vMAX}')
        A('v_cvt_pk_bf16_f32 v28, v24, v25'); A('v_cvt_pk_bf16_f32 v29, v26, v27')
        A('v_lshlrev_b32 v24, 16, v28'); A(f'v_and_b32 v25, s{sHI}, v28'); A('v_lshlrev_b32 v26, 16, v29'); A(f'v_and_b32 v27, s{sHI}, v29')
        for r in range(4): A(f'v_mul_f32 v{24+r}, s{sSCALE}, v{24+r}')
        d=vS+4*T+2*a
        A(f'v_cvt_pk_bf16_f32 v{d}, v24, v25'); A(f'v_cvt_pk_bf16_f32 v{d+1}, v26, v27')
    def maxfin():
        allred('max',vMAX,24,bits=(4,5))
        rne(vM2,vMAX); A(f'v_mul_f32 v{vM2}, s{sSCALE}, v{vM2}'); rne(vM2,vM2)
        A(f'v_mul_f32 v{vMLOG}, s{sLOG2E}, v{vM2}')
        stamp(3)
        stamp_all(24)
    def v_exp(U):
        if nocomp: return
        s=vS+4*U
        for k in range(4):
            A(f'v_lshlrev_b32 v{24+2*k}, 16, v{s+k}'); A(f'v_and_b32 v{25+2*k}, s{sHI}, v{s+k}')
        for k in range(8): A(f'v_fma_f32 v{24+k}, v{24+k}, s{sLOG2E}, -v{vMLOG}')
        for k in range(8): A(f'v_exp_f32 v{24+k}, v{24+k}')
        A.nop(1)
        for k in range(4): A(f'v_cvt_pk_bf16_f32 v{s+k}, v{24+2*k}, v{25+2*k}')
        A('v_add_f32 v24, v24, v25'); A('v_add_f32 v26, v26, v27'); A('v_add_f32 v28, v28, v29'); A('v_add_f32 v30, v30, v31')
        A('v_add_f32 v24, v24, v26'); A('v_add_f32 v28, v28, v30'); A('v_add_f32 v24, v24, v28'); A(f'v_add_f32 v{vSUM}, v{vSUM}, v24')
    def transition():
        A.c('transition: per-wave m,l -> LDS ; barrier ; WG-level m,l publish ; MLP finish')
        allred('add',vSUM,24,bits=(4,5))
        A(f'v_mov_b32 v24, v{vM2}'); A(f'v_mov_b32 v25, v{vSUM}')
        A(f's_lshl_b32 s{sT0}, s{sWAVE}, 5'); A(f's_add_u32 s{sT0}, s{sT0}, {L_ML}')
        A(f'v_lshlrev_b32 v26, 3, v{vL}'); A(f'v_add_u32 v26, s{sT0}, v26')
        A('s_mov_b64 exec, 0xf'); A('ds_write_b64 v26, v[24:25]'); A('s_mov_b64 exec, -1')
        A('s_waitcnt lgkmcnt(0)'); A('s_barrier')
        lab=ifwave('eq',4)
        A(f'v_and_b32 v26, 31, v{vL}'); A(f'v_lshlrev_b32 v26, 3, v26')
        A(f'ds_read_b64 v[24:25], v26 offset:{L_ML}'); A('s_waitcnt lgkmcnt(0)')
        A('v_mov_b32 v27, v24')
        A.nop(2); A(f'v_max_f32_dpp v27, v27, v27 {dpp("row_ror:4")}')
        A.nop(2); A(f'v_max_f32_dpp v27, v27, v27 {dpp("row_ror:8")}')
        allred('max',27,28,bits=(4,))
        A('v_sub_f32 v24, v24, v27'); A(f'v_mul_f32 v24, s{sLOG2E}, v24'); A('v_exp_f32 v24, v24'); A.nop(1)
        A('v_mul_f32 v25, v25, v24')
        A.nop(2); A(f'v_add_f32_dpp v25, v25, v25 {dpp("row_ror:4")}')
        A.nop(2); A(f'v_add_f32_dpp v25, v25, v25 {dpp("row_ror:8")}')
        allred('add',25,28,bits=(4,))
        A(f'v_mov_b32 v28, v27'); A(f'v_mov_b32 v29, s{sTAG}'); A(f'v_mov_b32 v30, v25'); A(f'v_mov_b32 v31, s{sTAG}')
        A(f's_lshl_b32 s{sT0}, s2, 6'); A(f's_add_u32 s{sT0}, s{sT0}, {WS_ML}')
        A('s_mov_b64 exec, 0xf')
        A.vmem(f'buffer_store_dwordx4 v[28:31], v{vV16}, {ws()}, s{sT0} offen {stflags}',certain=False)
        A('s_mov_b64 exec, -1')
        A.label(lab)
        stamp(11)
    def ml_poll_issue(track=True):
        lab=ifwave('eq',5) if track else None
        A(f's_lshl_b32 s{sT0}, s{sG}, 11'); A(f's_add_u32 s{sT0}, s{sT0}, {WS_ML}')
        for k in range(2):
            A(f'buffer_load_dwordx4 v[{32+4*k}:{35+4*k}], v{vV16}, {ws()}, s{sT0} offen offset:{k*1024} {pollflags}')
        if track: A.label(lab)
    def ml_check():
        assert MLPOLL+max(W,WODD)+1<=state['i'], state['i']
        lab=ifwave('eq',5)
        retry=A.newlabel('Lmr'); ok=A.newlabel('Lmok'); chk=A.newlabel('Lmc')
        A(f's_mov_b32 s{sCNT}, 0')
        A.label(chk)
        tagcheck([33,35,37,39],24,retry)
        A(f's_branch {ok}')
        A.label(retry); timeout(); ml_poll_issue(False); A('s_waitcnt vmcnt(0)'); A(f's_branch {chk}')
        A.label(ok)
        A('v_max_f32 v24, v32, v36')
        A.nop(2); A(f'v_max_f32_dpp v24, v24, v24 {dpp("row_ror:4")}')
        A.nop(2); A(f'v_max_f32_dpp v24, v24, v24 {dpp("row_ror:8")}')
        allred('max',24,25,bits=(4,5))
        A('v_sub_f32 v32, v32, v24'); A('v_sub_f32 v36, v36, v24'); A(f'v_mul_f32 v32, s{sLOG2E}, v32'); A(f'v_mul_f32 v36, s{sLOG2E}, v36')
        A('v_exp_f32 v32, v32'); A('v_exp_f32 v36, v36'); A.nop(1)
        A('v_mul_f32 v34, v34, v32'); A('v_fmac_f32 v34, v38, v36')
        A.nop(2); A(f'v_add_f32_dpp v34, v34, v34 {dpp("row_ror:4")}')
        A.nop(2); A(f'v_add_f32_dpp v34, v34, v34 {dpp("row_ror:8")}')
        allred('add',34,25,bits=(4,5))
        A(f'v_and_b32 v26, 31, v{vL}'); A(f'v_lshlrev_b32 v27, 3, v26')
        A(f'ds_read_b32 v28, v27 offset:{L_ML}')
        A('v_rcp_f32 v29, v34'); A('s_waitcnt lgkmcnt(0)')
        A('v_sub_f32 v28, v28, v24'); A(f'v_mul_f32 v28, s{sLOG2E}, v28'); A('v_exp_f32 v28, v28')
        A('v_fma_f32 v30, -v29, v34, 1.0'); A('v_fma_f32 v29, v30, v29, v29')
        A('v_mul_f32 v28, v28, v29')
        A('v_lshlrev_b32 v27, 2, v26')
        A(f'ds_write_b32 v27, v28 offset:{L_F}')
        A.label(lab)
    def v_pv(U,jp):
        if nocomp: return
        R=[vR+4*((64+8*U+t)%RING) for t in range(8)]
        P=vS+4*U
        for jj in range(2):
            j=2*jp+jj
            Fb=16 if jj==0 else 24
            for hi in range(2):
                for u in range(4):
                    A(f'v_perm_b32 v{Fb+4*hi+u}, v{R[2*u+1]+j}, v{R[2*u]+j}, s{sPHI if hi else sPLO}')
            if jj==1: A.nop(2)
        for jj in range(2):
            j=2*jp+jj; Fb=16 if jj==0 else 24
            for hi in range(2):
                i=2*j+hi; fr=Fb+4*hi; D=vO+4*i
                c='0' if U==0 else f'v[{D}:{D+3}]'
                A(f'v_mfma_f32_16x16x32_bf16 v[{D}:{D+3}], v[{P}:{P+3}], v[{fr}:{fr+3}], {c}')
    hooks[QPOLL]=q_poll_issue
    hooks[MLPOLL]=ml_poll_issue
    if XMODE==0: hooks[XL+1]=extra_loads
    work=[(0,-1,[],w0(c_ln1)),(0,-1,[],w0(c_ln3)),(0,-1,[],w0(c_q)),(0,-1,[],c_tag),(QCHK,-1,[],q_check)]
    kch=[]
    for T in range(8):
        for a in range(2):
            kch.append((0,8*T+4*a+3,[8*T+4*a+e for e in range(4)],(lambda T=T,a=a:k_chunk(T,a))))
    work+=kch
    work.append((0,-1,[],maxfin))
    for U in range(8): work.append((0,-1,[],(lambda U=U:v_exp(U))))
    work.append((0,-1,[],transition))
    placed=False
    for U in range(8):
        need=64+8*U+7
        if not placed and need>=MLCHK:
            work.append((MLCHK,-1,[],ml_check)); placed=True
        if U==7 and XMODE==1:
            work.append((0,need,[],extra_loads))
        work.append((0,need,[],(lambda U=U:v_pv(U,0))))
        work.append((0,need,[64+8*U+t for t in range(8)],(lambda U=U:v_pv(U,1))))
    wi=0
    while wi<len(work) or state['i']<NL:
        i=state['i']; issued=False
        if wi<HEADN:
            early,need,fr,fn=work[wi]; fn(); wi+=1
            for _ in range(HEADLOADS): issue_next(window=True,w0skip=(wi<HEADN))
            continue
        if i<NL and (i<RING or (i-RING) in freed):
            issue_next(); issued=True
        landed=state['i']-1-max(W,WODD) if state['i']<NL else -2
        n=0
        while wi<len(work) and n<perload:
            early,need,fr,fn=work[wi]
            if issued and state['i']<NL and (early>state['i'] or need>landed): break
            if need>landed and need>=0: kvwait(('kv',need))
            fn(); freed.update(fr); wi+=1; n+=1
            if not issued: break
    stamp(4)
    stamp_all(16)
    A.c('tail')
    A(f's_lshl_b32 s{sT0}, s{sWAVE}, 11'); A(f's_add_u32 s{sT0}, s{sT0}, {L_OB}'); A(f'v_add_u32 v26, s{sT0}, v{vV16}')
    A.nop(5)
    A('s_mov_b64 exec, 0xffff')
    for i in range(8): A(f'ds_write_b128 v26, v[{vO+4*i}:{vO+4*i+3}] offset:{i*256}')
    A('s_mov_b64 exec, -1')
    A(f'v_and_b32 v26, 3, v{vL}'); A('v_lshlrev_b32 v26, 9, v26'); A(f'v_lshrrev_b32 v27, 2, v{vL}'); A('v_lshl_add_u32 v26, v27, 4, v26')
    A(f's_lshl_b32 s{sT0}, s{sWAVE}, 2'); A(f's_add_u32 s{sT1}, s{sT0}, {L_OB}'); A(f'v_add_u32 v26, s{sT1}, v26')
    A(f'v_mov_b32 v27, s{sT0}')
    A('s_waitcnt lgkmcnt(0)'); A('s_barrier')
    lab=ifwave('lt',4)
    for w in range(8): A(f'ds_read2st64_b32 v[{64+2*w}:{65+2*w}], v26 offset0:{8*w} offset1:{8*w+1}')
    for w in range(8): A(f'ds_read_b32 v{80+w}, v27 offset:{L_F+16*w}')
    A(f's_lshl_b32 s{sT0}, s2, 12'); A(f's_lshl_b32 s{sT1}, s{sWAVE}, 10'); A(f's_add_u32 s{sT0}, s{sT0}, s{sT1}'); A(f's_add_u32 s{sT0}, s{sT0}, {WS_PART}')
    A(f'v_mov_b32 v29, s{sTAG}'); A(f'v_mov_b32 v31, s{sTAG}')
    A('s_waitcnt lgkmcnt(0)')
    A('v_mul_f32 v28, v64, v80'); A('v_mul_f32 v30, v65, v80'); A('v_mul_f32 v32, v66, v81'); A('v_mul_f32 v33, v67, v81')
    for w in range(2,8,2):
        A(f'v_fmac_f32 v28, v{64+2*w}, v{80+w}'); A(f'v_fmac_f32 v30, v{65+2*w}, v{80+w}')
        A(f'v_fmac_f32 v32, v{66+2*w}, v{81+w}'); A(f'v_fmac_f32 v33, v{67+2*w}, v{81+w}')
    A('v_add_f32 v28, v28, v32'); A('v_add_f32 v30, v30, v33')
    A.vmem(f'buffer_store_dwordx4 v[28:31], v{vV16}, {ws()}, s{sT0} offen {stflags}',certain=False)
    A.label(lab)
    stamp(5)
    if XMODE==2: extra_loads()
    A(f's_bitcmp1_b32 s2, 0'); A(f's_cbranch_scc{1 if PAR==0 else 0} L_light')
    A.c('MLP partial')
    A(f's_lshl_b32 s{sT0}, s{sWAVE}, 7'); A(f'v_and_b32 v18, 31, v{vL}'); A('v_lshlrev_b32 v18, 1, v18'); A(f'v_add_u32 v18, s{sT0}, v18')
    A(f'ds_read_u16 v20, v18 offset:{L_XN}'); A(f'ds_read_u16 v22, v18 offset:{L_XN+64}')
    A('s_waitcnt vmcnt(16) lgkmcnt(0)')
    labq=ifwave('lt',4)
    A.label(labq)
    A('v_lshlrev_b32 v21, 16, v20'); A('v_lshlrev_b32 v23, 16, v22')
    for m in range(2):
        for j in range(4):
            A(f'v_dot2_f32_bf16 v{24+8*m+2*j}, v{GU[2*m]+j}, v20, 0'); A(f'v_dot2_f32_bf16 v{25+8*m+2*j}, v{GU[2*m]+j}, v21, 0')
    for m in range(2):
        for j in range(4):
            A(f'v_dot2c_f32_bf16 v{24+8*m+2*j}, v{GU[2*m+1]+j}, v22'); A(f'v_dot2c_f32_bf16 v{25+8*m+2*j}, v{GU[2*m+1]+j}, v23')
    A.nop(1)
    r=treduce([24+k for k in range(16)],(3,2,1,0))
    allred('add',r,22,bits=(4,))
    A(f'v_lshrrev_b32 v22, 5, v{vL}'); A('v_lshlrev_b32 v22, 6, v22'); A(f'v_and_b32 v23, 15, v{vL}'); A('v_lshl_add_u32 v22, v23, 2, v22')
    A(f's_lshl_b32 s{sT0}, s{sWAVE}, 7'); A(f'v_add_u32 v23, s{sT0}, v22')
    A(f'ds_write_b32 v23, v{r} offset:{L_GU}')
    A('s_waitcnt lgkmcnt(0)'); A('s_barrier')
    labhi=A.newlabel('Lhi')
    A(f's_cmp_ge_u32 s{sWAVE}, 4'); A(f's_cbranch_scc1 {labhi}')
    A('s_waitcnt vmcnt(0)')
    for r in range(32):
        A(f'v_lshlrev_b32 v{160+2*r}, 16, v{128+r}'); A(f'v_and_b32 v{161+2*r}, s{sHI}, v{128+r}')
    A(f's_lshr_b32 s{sT0}, s2, 1'); A(f's_lshl_b32 s{sT0}, s{sT0}, 12'); A(f's_lshl_b32 s{sT1}, s{sWAVE}, 10'); A(f's_add_u32 s{sT0}, s{sT0}, s{sT1}'); A(f's_add_u32 s{sT0}, s{sT0}, {WS_SP}')
    A(f'v_mov_b32 v29, s{sTAG}'); A(f'v_mov_b32 v31, s{sTAG}'); A('v_mov_b32 v24, 0')
    A('s_barrier')
    for k in range(8): A(f'ds_read_b128 v[{64+4*k}:{67+4*k}], v24 offset:{L_O16+16*k}')
    for k in range(8):
        A(f's_waitcnt lgkmcnt({7-k})')
        for q in range(4):
            r=4*k+q
            a0,a1=(28,30) if q%2==0 else (32,33)
            if r<2:
                A(f'v_mul_f32 v{a0}, v{64+r}, v{160+2*r}'); A(f'v_mul_f32 v{a1}, v{64+r}, v{161+2*r}')
            else:
                A(f'v_fmac_f32 v{a0}, v{64+r}, v{160+2*r}'); A(f'v_fmac_f32 v{a1}, v{64+r}, v{161+2*r}')
    A('v_add_f32 v28, v28, v32'); A('v_add_f32 v30, v30, v33')
    A(f'buffer_store_dwordx4 v[28:31], v{vV16}, {ws()}, s{sT0} offen {stflags}')
    stamp(7)
    A('s_branch L_end')
    A.label(labhi)
    laby=A.newlabel('Lny')
    A(f's_cmp_eq_u32 s{sVALID}, 0'); A(f's_cbranch_scc1 {laby}')
    A(f'v_add_u32 v22, {L_GU}, v22')
    for k in range(4): A(f'ds_read2_b32 v[{24+2*k}:{25+2*k}], v22 offset0:{64*k} offset1:{64*k+32}')
    A('s_waitcnt lgkmcnt(0)')
    A('v_add_f32 v24, v24, v25'); A('v_add_f32 v26, v26, v27'); A('v_add_f32 v28, v28, v29'); A('v_add_f32 v30, v30, v31')
    A('v_add_f32 v24, v24, v26'); A('v_add_f32 v28, v28, v30'); A('v_add_f32 v24, v24, v28')
    rne(24,24)
    A('v_mul_f32 v25, v24, v24'); A('v_mul_f32 v25, v25, v24'); A('v_mov_b32 v26, 0x3d372713'); A('v_fma_f32 v25, v25, v26, v24')
    A('v_mul_f32 v25, 0xc0135761, v25'); A('v_exp_f32 v25, v25'); A.nop(1)
    A('v_add_f32 v25, 1.0, v25'); A('v_rcp_f32 v25, v25'); A.nop(1)
    A('v_mul_f32 v25, v24, v25'); rne(25,25)
    A.nop(2); A(f'v_mov_b32_dpp v26, v24 {dpp("row_shl:8")}')
    A('v_mul_f32 v25, v25, v26'); rne(25,25); A.nop(1)
    for r in range(16): A(f'v_readlane_b32 s{4+r}, v25, {(r//8)*32+(r%8)}')
    A('s_waitcnt vmcnt(0)')
    A('v_mov_b32 v24, 0'); A('v_mov_b32 v26, 0'); A('v_mov_b32 v30, 0'); A('v_mov_b32 v31, 0')
    for r in range(16):
        a0,a1=(24,26) if r%2==0 else (30,31)
        A(f'v_lshlrev_b32 v28, 16, v{128+r}'); A(f'v_and_b32 v29, s{sHI}, v{128+r}')
        A(f'v_fmac_f32 v{a0}, s{4+r}, v28'); A(f'v_fmac_f32 v{a1}, s{4+r}, v29')
    A('v_add_f32 v24, v24, v30'); A('v_add_f32 v26, v26, v31')
    A(f'v_mov_b32 v25, s{sTAG}'); A(f'v_mov_b32 v27, s{sTAG}')
    A(f's_lshl_b32 s{sT0}, s{sB}, 12'); A(f's_sub_u32 s{sT1}, s{sWAVE}, 4'); A(f's_lshl_b32 s{sT1}, s{sT1}, 10'); A(f's_add_u32 s{sT0}, s{sT0}, s{sT1}'); A(f's_add_u32 s{sT0}, s{sT0}, {WS_YP}')
    A(f'buffer_store_dwordx4 v[24:27], v{vV16}, {ws()}, s{sT0} offen {stflags}')
    A.label(laby)
    A(f's_cmp_lg_u32 s{sWAVE}, 4'); A('s_cbranch_scc1 L_end')
    stamp(12,4)
    A(f'v_lshrrev_b32 v26, 4, v{vL}'); A('v_lshlrev_b32 v26, 12, v26'); A(f'v_and_b32 v28, 15, v{vL}'); A('v_lshl_add_u32 v26, v28, 4, v26')
    A(f's_lshl_b32 s{sT0}, s{sG}, 17'); A(f's_lshr_b32 s{sT1}, s{sI}, 1'); A(f's_lshl_b32 s{sT1}, s{sT1}, 8'); A(f's_add_u32 s{sT0}, s{sT0}, s{sT1}'); A(f's_add_u32 s{sT0}, s{sT0}, {WS_PART}')
    A(f's_mov_b32 s{sCNT}, 0')
    poll=A.newlabel('Lp1'); A.label(poll); timeout()
    for k in range(8):
        A(f's_add_u32 s{sT1}, s{sT0}, {k*4*4096}')
        A(f'buffer_load_dwordx4 v[{64+4*k}:{67+4*k}], v26, {ws()}, s{sT1} offen {pollflags}')
    A('s_waitcnt vmcnt(0)')
    tagcheck([64+4*k+o for k in range(8) for o in (1,3)],24,poll)
    stamp(6,4)
    for o in (0,2):
        A(f'v_add_f32 v{64+o}, v{64+o}, v{68+o}'); A(f'v_add_f32 v{72+o}, v{72+o}, v{76+o}'); A(f'v_add_f32 v{80+o}, v{80+o}, v{84+o}'); A(f'v_add_f32 v{88+o}, v{88+o}, v{92+o}')
    for o in (0,2):
        A(f'v_add_f32 v{64+o}, v{64+o}, v{72+o}'); A(f'v_add_f32 v{80+o}, v{80+o}, v{88+o}')
    for o in (0,2): A(f'v_add_f32 v{64+o}, v{64+o}, v{80+o}')
    A.nop(1)
    allred2('add',[64,66],[24,25],(4,5))
    A('v_cvt_pk_bf16_f32 v24, v64, v66')
    A('v_lshlrev_b32 v64, 16, v24'); A(f'v_and_b32 v65, s{sHI}, v24')
    A(f'v_and_b32 v26, 15, v{vL}'); A('v_lshlrev_b32 v26, 3, v26')
    A(f'ds_write_b64 v26, v[64:65] offset:{L_O16}')
    A('s_waitcnt lgkmcnt(0)')
    A('s_barrier')
    A('s_branch L_end')
    A.label('L_light')
    A(f's_cmp_ge_u32 s2, 64'); A('s_cbranch_scc1 L_end')
    A(f'v_lshrrev_b32 v8, 3, v{vL}'); A('v_lshlrev_b32 v8, 12, v8'); A(f'v_and_b32 v26, 7, v{vL}'); A('v_lshl_add_u32 v8, v26, 4, v8')
    A(f's_lshr_b32 s{sT4}, s2, 1'); A(f's_lshl_b32 s{sT4}, s{sT4}, 7'); A(f's_lshl_b32 s{sT1}, s{sWAVE}, 16'); A(f's_add_u32 s{sT4}, s{sT4}, s{sT1}')
    A('v_lshlrev_b32 v29, 2, v26'); A(f's_lshr_b32 s{sT0}, s2, 1'); A(f's_lshl_b32 s{sT0}, s{sT0}, 5')
    A(f'buffer_load_dword v{vEP}, v29, s[{sX}:{sX+3}], s{sT0} offen')
    for k in range(2):
        A(f'v_mov_b32 v{72+4*k}, 0'); A(f'v_mov_b32 v{73+4*k}, s{sTAG}'); A(f'v_mov_b32 v{74+4*k}, 0'); A(f'v_mov_b32 v{75+4*k}, s{sTAG}')
    A(f's_mov_b32 s{sCNT}, 0')
    poll=A.newlabel('Lp2'); A.label(poll); timeout()
    for k in range(2):
        A(f's_add_u32 s{sT1}, s{sT4}, {WS_SP+k*8*4096}')
        A(f'buffer_load_dwordx4 v[{64+4*k}:{67+4*k}], v8, {ws()}, s{sT1} offen {pollflags}')
    laby=A.newlabel('Ly7')
    A(f's_cmp_eq_u32 s{sWAVE}, 7'); A(f's_cbranch_scc1 {laby}')
    for k in range(2):
        A(f's_add_u32 s{sT1}, s{sT4}, {WS_YP+k*8*4096}')
        A(f'buffer_load_dwordx4 v[{72+4*k}:{75+4*k}], v8, {ws()}, s{sT1} offen {pollflags}')
    A.label(laby)
    A('s_waitcnt vmcnt(0)')
    tagcheck([64+4*k+o for k in range(4) for o in (1,3)],24,poll)
    stamp(8)
    A('v_add_f32 v8, v64, v68'); A('v_add_f32 v9, v66, v70'); A('v_add_f32 v10, v72, v76'); A('v_add_f32 v11, v74, v78')
    A.nop(2)
    allred2('add',[8,9,10,11],[24,25,27,28],["row_ror:8",4,5])
    A('v_lshlrev_b32 v26, 4, v26')
    A(f's_lshl_b32 s{sT0}, s{sWAVE}, 7'); A(f'v_add_u32 v28, s{sT0}, v26')
    A(f'ds_write_b128 v28, v[8:11] offset:{L_FIN}')
    A('s_waitcnt lgkmcnt(0)'); A('s_barrier')
    A(f's_cmp_lg_u32 s{sWAVE}, 0'); A('s_cbranch_scc1 L_end')
    for w in range(8): A(f'ds_read_b128 v[{64+4*w}:{67+4*w}], v26 offset:{L_FIN+w*128}')
    A('s_waitcnt lgkmcnt(0)')
    for o in range(4):
        A(f'v_add_f32 v{64+o}, v{64+o}, v{68+o}'); A(f'v_add_f32 v{72+o}, v{72+o}, v{76+o}'); A(f'v_add_f32 v{80+o}, v{80+o}, v{84+o}'); A(f'v_add_f32 v{88+o}, v{88+o}, v{92+o}')
    for o in range(4):
        A(f'v_add_f32 v{64+o}, v{64+o}, v{72+o}'); A(f'v_add_f32 v{80+o}, v{80+o}, v{88+o}')
    for o in range(4): A(f'v_add_f32 v{64+o}, v{64+o}, v{80+o}')
    A('v_cvt_pk_bf16_f32 v32, v64, v65'); A('v_cvt_pk_bf16_f32 v33, v66, v67')
    A('v_lshlrev_b32 v64, 16, v32'); A(f'v_and_b32 v65, s{sHI}, v32'); A('v_lshlrev_b32 v66, 16, v33'); A(f'v_and_b32 v67, s{sHI}, v33')
    A('v_mul_f32 v28, 0xbfb8aa3b, v66'); A('v_mul_f32 v29, 0xbfb8aa3b, v67'); A('v_exp_f32 v28, v28'); A('v_exp_f32 v29, v29'); A.nop(1)
    A('v_add_f32 v28, 1.0, v28'); A('v_add_f32 v29, 1.0, v29'); A('v_rcp_f32 v28, v28'); A('v_rcp_f32 v29, v29'); A.nop(1)
    A('v_mul_f32 v28, v66, v28'); A('v_mul_f32 v29, v67, v29')
    A('v_cvt_pk_bf16_f32 v32, v28, v29'); A('v_lshlrev_b32 v28, 16, v32'); A(f'v_and_b32 v29, s{sHI}, v32')
    A('v_mul_f32 v28, v64, v28'); A('v_mul_f32 v29, v65, v29')
    A('v_cvt_pk_bf16_f32 v32, v28, v29'); A('v_lshlrev_b32 v28, 16, v32'); A(f'v_and_b32 v29, s{sHI}, v32')
    A(f'v_lshlrev_b32 v30, 16, v{vEP}'); A(f'v_and_b32 v31, s{sHI}, v{vEP}')
    A('v_add_f32 v28, v30, v28'); A('v_add_f32 v29, v31, v29')
    A('v_cvt_pk_bf16_f32 v32, v28, v29')
    A(f'v_lshrrev_b32 v29, 2, v26'); A(f's_lshr_b32 s{sT0}, s2, 1'); A(f's_lshl_b32 s{sT0}, s{sT0}, 5')
    A(f's_mov_b64 exec, 0xff')
    A(f'buffer_store_dword v32, v29, s[{sOUT}:{sOUT+3}], s{sT0} offen')
    lab=A.newlabel('Lep')
    A(f's_cmp_gt_u32 s2, 1'); A(f's_cbranch_scc1 {lab}')
    A('s_mov_b64 exec, 1')
    A(f'v_mov_b32 v37, s{sTAG}')
    A(f'buffer_store_dword v37, off, {ws()}, 0 sc1')
    A.label(lab)
    A('s_mov_b64 exec, -1')
    stamp(9)
    A.label('L_end')
    A('s_endpgm')
    out=HDR+f'; @launch grid=(256,1,1) block=(512,1,1) lds={LDS_BYTES}\n'
    out+='.amdgcn_target "amdgcn-amd-amdhsa--gfx950"\n.text\n'+f'.globl {NAME}\n.p2align 8\n.type {NAME},@function\n{NAME}:\n'
    out+=A.text()
    out+=f'''.section .rodata,"a"
.p2align 6
.amdhsa_kernel {NAME}
  .amdhsa_next_free_vgpr 256
  .amdhsa_next_free_sgpr 102
  .amdhsa_accum_offset 256
  .amdhsa_group_segment_fixed_size 0
  .amdhsa_kernarg_size 96
  .amdhsa_user_sgpr_count 2
  .amdhsa_user_sgpr_kernarg_segment_ptr 1
  .amdhsa_system_sgpr_workgroup_id_x 1
.end_amdhsa_kernel
'''
    return out

if __name__=='__main__':
    out=sys.argv[1]
    kw=json.loads(sys.argv[2]) if len(sys.argv)>2 else {}
    open(out,'w').write(gen(**kw))
```

```python
import sys, json
HDR = open('recurrent_scan__gqa_block_cached__glu_gated_geglu__decode.s.ref').read()
HDR = HDR[:HDR.index('; Override launch')]
NAME = 'recurrent_scan__gqa_block_cached__glu_gated_geglu__decode_kernel'

def gen(nwg=256, waves=8, window=4, patK='lin', patV='lin', flags='nt', heads=8, headmap='div', tile=8192, order='mix', vgpr=256, lds=0, ring=32, wavemajor=False, rrot=0, skew=0, sigma=0, hper=0, tlbpf=0):
    nw = nwg*waves
    region = (128<<20)//heads
    wph = nw//heads
    steps = region//(wph*tile)
    lpt = tile//1024
    L=[]; A=L.append
    A(f'; @launch grid=({nwg},1,1) block=({waves*64},1,1) lds={lds}')
    A('.amdgcn_target "amdgcn-amd-amdhsa--gfx950"'); A('.text'); A(f'.globl {NAME}'); A('.p2align 8'); A(f'.type {NAME},@function'); A(f'{NAME}:')
    A(f'  s_cmp_ge_u32 s2, {nwg}'); A('  s_cbranch_scc1 L_end')
    A('  s_memrealtime s[10:11]')
    A('  s_load_dwordx2 s[4:5], s[0:1], 8'); A('  s_load_dwordx2 s[6:7], s[0:1], 16'); A('  s_load_dwordx2 s[8:9], s[0:1], 88')
    A('  v_lshrrev_b32 v1, 6, v0'); A('  v_and_b32 v2, 63, v0'); A('  s_nop 0'); A('  v_readfirstlane_b32 s24, v1')
    A('  s_waitcnt lgkmcnt(0)')
    for (d,s,sz) in ((12,4,128<<20),(16,6,128<<20),(20,8,512<<20)):
        A(f'  s_mov_b32 s{d}, s{s}'); A(f'  s_mov_b32 s{d+1}, s{s+1}'); A(f'  s_mov_b32 s{d+2}, {sz:#x}'); A(f'  s_mov_b32 s{d+3}, 0x00020000')
    wgph = nwg//heads
    if hper:
        per=32//hper
        A(f'  s_and_b32 s42, s2, 7'); A(f'  s_lshr_b32 s27, s2, 3')
        A(f'  s_lshr_b32 s43, s27, {per.bit_length()-1}')
        A(f'  s_mul_i32 s43, s43, {8//hper}'); A(f'  s_add_u32 s26, s42, s43'); A(f'  s_and_b32 s26, s26, 7')
    elif headmap=='div':
        A(f'  s_lshr_b32 s26, s2, {wgph.bit_length()-1}')
        A(f'  s_and_b32 s27, s2, {wgph-1}')
    else:
        A(f'  s_and_b32 s26, s2, {heads-1}')
        A(f'  s_lshr_b32 s27, s2, {heads.bit_length()-1}')
    if wavemajor:
        A(f'  s_mul_i32 s25, s24, {wgph}')
        A('  s_add_u32 s25, s25, s27')
    else:
        A(f'  s_mul_i32 s25, s27, {waves}')
        A('  s_add_u32 s25, s25, s24')
    A(f'  s_mul_i32 s28, s26, {region}')
    A(f'  s_mul_i32 s25, s25, {tile}')
    A('  s_add_u32 s28, s28, s25')
    def lane(pat, v):
        if pat=='lin':
            A(f'  v_lshlrev_b32 v{v}, 4, v2')
        elif pat=='a16':
            A(f'  v_and_b32 v{v}, 15, v2'); A(f'  v_lshlrev_b32 v{v}, 8, v{v}'); A(f'  v_lshrrev_b32 v5, 4, v2'); A(f'  v_lshl_add_u32 v{v}, v5, 4, v{v}')
        elif pat=='v4':
            A(f'  v_lshrrev_b32 v{v}, 4, v2'); A(f'  v_lshlrev_b32 v{v}, 10, v{v}'); A(f'  v_and_b32 v5, 15, v2'); A(f'  v_lshl_add_u32 v{v}, v5, 4, v{v}')
        elif pat=='a8':
            A(f'  v_and_b32 v{v}, 7, v2'); A(f'  v_lshlrev_b32 v{v}, 8, v{v}'); A(f'  v_lshrrev_b32 v5, 3, v2'); A(f'  v_lshl_add_u32 v{v}, v5, 4, v{v}')
        elif pat=='p4':
            A(f'  v_and_b32 v{v}, 3, v2'); A(f'  v_lshlrev_b32 v{v}, 8, v{v}'); A(f'  v_lshrrev_b32 v5, 2, v2'); A(f'  v_lshl_add_u32 v{v}, v5, 4, v{v}')
        elif pat=='x16':
            A(f'  v_lshrrev_b32 v5, 4, v2'); A(f'  v_xor_b32 v{v}, v5, v2'); A(f'  v_and_b32 v{v}, 15, v{v}'); A(f'  v_lshlrev_b32 v{v}, 4, v{v}'); A(f'  v_lshl_add_u32 v{v}, v5, 8, v{v}')
    lane(patK,3); lane(patV,4)
    jstride={'lin':1024,'a16':64,'v4':256}
    seq=[]
    if order=='mix':
        for t in range(steps):
            seq+=[('K',t,i) for i in range(lpt)]+[('V',t,i) for i in range(lpt)]
    else:
        seq=[('K',t,i) for t in range(steps) for i in range(lpt)]+[('V',t,i) for t in range(steps) for i in range(lpt)]
    A('  s_mov_b32 s29, s28'); A('  s_mov_b32 s30, s28')
    cur={'K':0,'V':0}
    A('  v_mov_b32 v6, 0')
    R0=8
    for idx,(m,t,i) in enumerate(seq):
        pat=patK if m=='K' else patV
        base=t*wph*tile+(i//4)*4096
        if pat=='a8': imm=((i%4)//2)*2048+(i%2)*128
        elif pat in ('p4','x16'): imm=(i%4)*1024
        else: imm=(i%4)*jstride[pat]
        sreg=29 if m=='K' else 30
        if sigma:
            if i%4==0:
                nt=region//tile
                A(f'  s_mul_i32 s40, s26, {sigma*tile}'); A(f'  s_add_u32 s40, s40, s25'); A(f'  s_add_u32 s40, s40, {t*wph*tile}'); A(f'  s_and_b32 s40, s40, {region-1}')
                A(f'  s_mul_i32 s41, s26, {region}'); A(f'  s_add_u32 s{sreg}, s41, s40'); A(f'  s_add_u32 s{sreg}, s{sreg}, {(i//4)*4096}')
        elif rrot:
            if i%4==0:
                A(f'  s_mul_i32 s40, s26, {rrot}'); A(f'  s_add_u32 s40, s40, {t}'); A(f'  s_and_b32 s40, s40, {steps-1}')
                A(f'  s_mul_i32 s40, s40, {wph*tile}'); A(f'  s_add_u32 s{sreg}, s28, s40'); A(f'  s_add_u32 s{sreg}, s{sreg}, {(i//4)*4096}')
        elif base!=cur[m]:
            A(f'  s_add_u32 s{sreg}, s{sreg}, {base-cur[m]}'); cur[m]=base
        r=R0+4*(idx%ring)
        if idx>=window:
            A(f'  s_waitcnt vmcnt({window-1})')
            rc=R0+4*((idx-window)%ring)
            A(f'  v_xor_b32 v6, v6, v{rc}')
        srd=12 if m=='K' else 16
        vo=3 if m=='K' else 4
        A(f'  buffer_load_dwordx4 v[{r}:{r+3}], v{vo}, s[{srd}:{srd+3}], s{sreg} offen offset:{imm} {flags}')
        if tlbpf and i==0:
            t2=t+tlbpf; m2=m
            if t2>=steps:
                if m=='K': t2-=steps; m2='V'
                else: t2=None
            if t2 is not None:
                srd2=12 if m2=='K' else 16
                A(f'  s_cmp_lg_u32 s24, 7'); A(f'  s_cbranch_scc1 Lpf{idx}')
                A(f'  s_mul_i32 s44, s26, {rrot}'); A(f'  s_add_u32 s44, s44, {t2}'); A(f'  s_and_b32 s44, s44, {steps-1}')
                A(f'  s_mul_i32 s44, s44, {wph*tile}'); A(f'  s_add_u32 s44, s28, s44')
                A(f'  buffer_load_dword v7, off, s[{srd2}:{srd2+3}], s44 nt')
                A(f'Lpf{idx}:')
    A('  s_waitcnt vmcnt(0)')
    A('  s_memrealtime s[32:33]'); A('  s_waitcnt lgkmcnt(0)')
    A('  v_mov_b32 v8, s10'); A('  v_mov_b32 v9, s11'); A('  v_mov_b32 v10, s32'); A('  v_mov_b32 v11, s33')
    A('  s_mul_i32 s26, s2, %d'%waves); A('  s_add_u32 s26, s26, s24'); A('  s_lshl_b32 s26, s26, 4')
    A('  v_mov_b32 v12, 0'); A('  v_cmp_eq_u32 vcc, 0, v2'); A('  s_and_saveexec_b64 s[34:35], vcc')
    A('  buffer_store_dwordx4 v[8:11], v12, s[20:23], s26 offen'); A('  s_waitcnt vmcnt(0)')
    A('L_end:'); A('  s_endpgm')
    A('.section .rodata,"a"'); A('.p2align 6'); A(f'.amdhsa_kernel {NAME}')
    A(f'  .amdhsa_next_free_vgpr {vgpr}'); A('  .amdhsa_next_free_sgpr 64'); A(f'  .amdhsa_accum_offset {min(256,vgpr)}')
    A('  .amdhsa_group_segment_fixed_size 0'); A('  .amdhsa_kernarg_size 96'); A('  .amdhsa_user_sgpr_count 2'); A('  .amdhsa_user_sgpr_kernarg_segment_ptr 1'); A('  .amdhsa_system_sgpr_workgroup_id_x 1'); A('.end_amdhsa_kernel')
    return HDR+'\n'.join(L)+'\n'
if __name__=='__main__':
    cfgs=json.loads(open(sys.argv[1]).read())
    for name,c in cfgs.items():
        open(f'{name}.s','w').write(gen(**c))
    print(' '.join(n+'.s' for n in cfgs))
    print(json.dumps(['exp/'+n+'.s' for n in cfgs]))
```
